```python
import torch

def _softmax(x, axis=-1):
    return torch.softmax(x, dim=axis)

def _gelu(x):
    return torch.nn.functional.gelu(x, approximate='tanh')

def _silu(x):
    return torch.nn.functional.silu(x)

def _sigmoid(x):
    return torch.sigmoid(x)

def _layernorm(x, axis=-1, eps=1e-05):
    m = x.mean(dim=axis, keepdim=True)
    v = x.var(dim=axis, keepdim=True, unbiased=False)
    return (x - m) / torch.sqrt(v + eps)

def _scatter_add(tgt, idx, src, axis=0):
    return tgt.clone().index_add_(axis, idx, src)

def _segment_sum(src, seg, n):
    out = torch.zeros((n,) + src.shape[1:], dtype=src.dtype)
    return out.index_add_(0, seg, src)

def _pad(x, pw):
    flat = tuple((v for pair in reversed(pw) for v in pair))
    return torch.nn.functional.pad(x, flat)
kernel_name = 'adaLN_cond__ssm_conv_s4__glu_gated_bilinear__prompt'

def setup_inputs():

    _w = lambda a: (lambda t: t.to(torch.bfloat16) if t.is_floating_point() else t)(torch.as_tensor(a))

    def _A_setup():
        B, L, D, N = (1, 2048, 512, 128)
        A_re = -(lambda _x: torch.exp(torch.as_tensor(_x)))((lambda *s: torch.randn(*s, dtype=torch.bfloat16) * 3.2)(D, N))
        A_im = torch.pi * (lambda *s: torch.randn(*s, dtype=torch.bfloat16) * 0.1)(D, N)
        B_re = (lambda *s: torch.randn(*s, dtype=torch.bfloat16) * 0.1)(D, N)
        B_im = (lambda *s: torch.randn(*s, dtype=torch.bfloat16) * 0.1)(D, N)
        C_re = (lambda *s: torch.randn(*s, dtype=torch.bfloat16) * 0.1)(D, N)
        C_im = (lambda *s: torch.randn(*s, dtype=torch.bfloat16) * 0.1)(D, N)
        log_dt = (lambda *s: torch.randn(*s, dtype=torch.bfloat16) * 0.1)(D) * 0.5 - 4.0
        Dskip = (lambda *s: torch.randn(*s, dtype=torch.bfloat16) * 0.1)(D)
        return {'u': _w((lambda *s: torch.randn(*s, dtype=torch.bfloat16) * 0.05)(B, L, D)), 'A_re': _w(A_re), 'A_im': _w(A_im), 'B_re': _w(B_re), 'B_im': _w(B_im), 'C_re': _w(C_re), 'C_im': _w(C_im), 'log_dt': _w(log_dt), 'Dskip': _w(Dskip)}
    _A_in = _A_setup()

    def _B_setup():
        B, S, D, F = (1, 2048, 512, 1792)
        return {'x': _w((lambda *s: torch.randn(*s, dtype=torch.bfloat16) * 0.05)(B, S, D)), 'w_gate': _w((lambda *s: torch.randn(*s, dtype=torch.bfloat16) * 1.6)(D, F) * D ** (-0.5)), 'w_up': _w((lambda *s: torch.randn(*s, dtype=torch.bfloat16) * 1.6)(D, F) * D ** (-0.5)), 'w_down': _w((lambda *s: torch.randn(*s, dtype=torch.bfloat16) * 1.6)(F, D) * F ** (-0.5))}
    _B_in = _B_setup()
    return {'A_u': _A_in['u'], 'A_A_re': _A_in['A_re'], 'A_A_im': _A_in['A_im'], 'A_B_re': _A_in['B_re'], 'A_B_im': _A_in['B_im'], 'A_C_re': _A_in['C_re'], 'A_C_im': _A_in['C_im'], 'A_log_dt': _A_in['log_dt'], 'A_Dskip': _A_in['Dskip'], 'B_x': _B_in['x'], 'B_w_gate': _B_in['w_gate'], 'B_w_up': _B_in['w_up'], 'B_w_down': _B_in['w_down'], 'c': _w((lambda *s: torch.randn(*s, dtype=torch.bfloat16) * 0.2)(1, 512) * 8.0), 'w_mod': _w((lambda *s: torch.randn(*s, dtype=torch.bfloat16) * 0.2)(512, 6 * 512) * 512 ** (-0.5) * 8.0)}

def reference(A_u, A_A_re, A_A_im, A_B_re, A_B_im, A_C_re, A_C_im, A_log_dt, A_Dskip, B_x, B_w_gate, B_w_up, B_w_down, c, w_mod):

    def _A_ref(u, A_re, A_im, B_re, B_im, C_re, C_im, log_dt, Dskip):
        Bsz, L, D = u.shape
        dt = torch.exp(log_dt)[:, None]
        A = A_re + 1j * A_im
        Bc = B_re + 1j * B_im
        Cc = C_re + 1j * C_im
        logdA = dt * A
        dB = dt * Bc
        l = (lambda x, dt: x.to(dt))(torch.arange(L), A_re.dtype)
        P = torch.exp(logdA[:, :, None] * l[None, None, :])
        K = torch.einsum('dn,dnl,dn->dl', Cc, P, dB).real
        L2 = 2 * L
        Kp = _pad(K, ((0, 0), (0, L)))
        up = (lambda x, *d: x.permute(*d))(u, 0, 2, 1)
        up = _pad(up, ((0, 0), (0, 0), (0, L)))
        Kf = (lambda x, axes=(-2, -1): torch.fft.rfft2(x.float(), dim=axes))(Kp[:, None, :], axes=(-2, -1))
        Uf = (lambda x, axes=(-2, -1): torch.fft.rfft2(x.float(), dim=axes))(up[:, :, None, :], axes=(-2, -1))
        Yf = Uf * Kf[None, :, :, :]
        y = (lambda x, s, axes=(-2, -1): torch.fft.irfft2(x, s=s, dim=axes).to(torch.bfloat16))(Yf, (1, L2), axes=(-2, -1))[:, :, 0, :L]
        y = (lambda x, *d: x.permute(*d))(y, 0, 2, 1) + u * Dskip[None, None, :]
        return y

    def _B_ref(x, w_gate, w_up, w_down):
        g = torch.einsum('bsd,df->bsf', x, w_gate)
        u = torch.einsum('bsd,df->bsf', x, w_up)
        h = g * u
        return torch.einsum('bsf,fd->bsd', h, w_down)
    x = A_u
    mod = (_silu(c) @ w_mod).reshape(c.shape[0], 6, 1, -1)
    sa, ca, ga, sb, cb, gb = (mod[:, 0].clone(), mod[:, 1].clone(), mod[:, 2].clone(), mod[:, 3].clone(), mod[:, 4].clone(), mod[:, 5].clone())
    h = _layernorm(x, axis=-1) * (1 + ca) + sa
    x = x + ga * _A_ref(h, A_A_re, A_A_im, A_B_re, A_B_im, A_C_re, A_C_im, A_log_dt, A_Dskip)
    h = _layernorm(x, axis=-1) * (1 + cb) + sb
    x = x + gb * _B_ref(h, B_w_gate, B_w_up, B_w_down)
    return x
```

```python
import re

TRANS = ("v_exp_f32", "v_log_f32", "v_rcp_f32", "v_rsq_f32", "v_sqrt_f32", "v_sin_f32", "v_cos_f32",
         "v_rcp_iflag_f32")

_reg_re = re.compile(r"(?<![\w.])([vas])(\d+)(?![\w\[])|(?<![\w.])([vas])\[(\d+):(\d+)\]")


def regs_of(op):
    out = set()
    for m in _reg_re.finditer(op):
        if m.group(1):
            out.add((m.group(1), int(m.group(2))))
        else:
            for r in range(int(m.group(4)), int(m.group(5)) + 1):
                out.add((m.group(3), r))
    if re.search(r"\bvcc\b", op):
        out.add(("s", "vcc"))
    if re.search(r"\bexec\b", op):
        out.add(("s", "exec"))
    if re.search(r"\bm0\b", op):
        out.add(("s", "m0"))
    return out


def split_ops(s):
    ops, depth, cur = [], 0, ""
    for ch in s:
        if ch in "[(":
            depth += 1
        if ch in "])":
            depth -= 1
        if ch == "," and depth == 0:
            ops.append(cur.strip())
            cur = ""
        else:
            cur += ch
    if cur.strip():
        ops.append(cur.strip())
    return ops


class Ins:
    def __init__(self, text):
        self.text = text
        t = text.split(";")[0].strip()
        self.label = t[:-1] if t.endswith(":") else None
        self.directive = t.startswith(".") and not self.label
        self.empty = not t
        self.mn = "" if (self.label or self.directive or self.empty) else t.split()[0]
        rest = t[len(self.mn):].strip() if self.mn else ""
        self.ops = split_ops(rest)
        mn = self.mn
        self.mfma = mn.startswith("v_mfma")
        self.valu = mn.startswith("v_") and not self.mfma
        self.ds = mn.startswith("ds_")
        self.vmem = mn.startswith(("buffer_", "global_", "flat_"))
        self.salu = mn.startswith("s_")
        self.trans = mn.replace("_e32", "").replace("_e64", "") in TRANS
        self.dpp = self.valu and bool(re.search(r"\b(row_|quad_perm|wave_|row_bcast)", rest) or mn.endswith("_dpp"))
        self.sdwa = self.valu and ("sdwa" in mn or "op_sel" in rest and not mn.startswith("v_pk_"))
        self.permlane = mn.startswith("v_permlane")
        self.lanerd = mn.startswith(("v_readlane", "v_readfirstlane"))
        self.lds_dma = self.vmem and (re.search(r"\blds\b", rest) is not None or "load_lds" in mn)
        self.passes = 0
        self.w, self.r = set(), set()
        self.srcc = set()
        self.stdata = set()
        o = self.ops
        if self.mfma:
            self.passes = 8 if "32x32" in mn else 4
            self.w = regs_of(o[0])
            self.ab = regs_of(o[1]) | regs_of(o[2])
            self.srcc = regs_of(o[3])
            self.r = self.ab | self.srcc
        elif self.valu:
            if mn.startswith("v_nop"):
                pass
            elif mn.startswith("v_cmp"):
                self.w = regs_of(o[0])
                if mn.startswith("v_cmpx"):
                    self.w |= {("s", "exec")}
                for x in o[1:]:
                    self.r |= regs_of(x)
            elif self.permlane or mn.startswith("v_swap"):
                self.w = regs_of(o[0]) | regs_of(o[1])
                self.r = set(self.w)
            else:
                self.w = regs_of(o[0])
                k = 1
                if re.match(r"v_(add|sub|subrev|addc|subb)_co", mn) or mn.startswith(("v_mad_u64", "v_div_scale")):
                    self.w |= regs_of(o[1])
                    k = 2
                for x in o[k:]:
                    self.r |= regs_of(x)
                if mn.startswith(("v_fmac", "v_dot2c", "v_writelane", "v_pk_fmac")) or self.dpp:
                    self.r |= regs_of(o[0])
        elif self.ds:
            if mn.startswith(("ds_read", "ds_bpermute", "ds_permute", "ds_swizzle")) or "_rtn" in mn:
                self.w = regs_of(o[0])
                for x in o[1:]:
                    self.r |= regs_of(x)
            else:
                for x in o:
                    self.r |= regs_of(x)
        elif self.vmem:
            is_load = "_load" in mn
            if is_load and not self.lds_dma:
                self.w = regs_of(o[0])
                for x in o[1:]:
                    self.r |= regs_of(x)
            else:
                for x in o:
                    self.r |= regs_of(x)
                if "atomic" in mn and re.search(r"\bsc0\b", rest):
                    self.w = regs_of(o[0])
            if "_store" in mn and ("x3" in mn or "x4" in mn):
                self.stdata = regs_of(o[0] if mn.startswith("buffer_") else o[1])
            if self.lds_dma:
                self.r.add(("s", "m0"))
        elif self.salu:
            if mn.startswith(("s_cmp", "s_waitcnt", "s_nop", "s_barrier", "s_branch", "s_cbranch", "s_endpgm",
                              "s_setprio", "s_sleep", "s_bitcmp")):
                for x in o:
                    self.r |= regs_of(x)
            elif o:
                self.w = regs_of(o[0])
                for x in o[1:]:
                    self.r |= regs_of(x)
                if "saveexec" in mn:
                    self.w.add(("s", "exec"))
        self.branch = o[0] if mn.startswith(("s_branch", "s_cbranch")) else None

    @property
    def real(self):
        return bool(self.mn)

    def states(self):
        if self.mn == "s_nop":
            return int(self.ops[0], 0) + 1
        return 1


def _vec(rs):
    return {r for r in rs if r[0] in "va"}


def _sc(rs):
    return {r for r in rs if r[0] == "s"}


def need(p, c):
    n = 0
    if p.valu:
        pv = _vec(p.w)
        ps = _sc(p.w)
        if c.mfma and pv & c.r:
            n = max(n, 2)
        if (c.dpp or c.permlane) and pv & c.r:
            n = max(n, 2)
        if c.lanerd and pv & c.r:
            n = max(n, 1)
        if p.trans and c.valu and not c.trans and pv & c.r:
            n = max(n, 1)
        if p.trans and (c.mfma or c.ds or c.vmem) and pv & c.r:
            n = max(n, 2)
        if p.sdwa and c.valu and pv & (c.r | c.w):
            n = max(n, 1)
        if ps:
            if c.vmem and ps & c.r:
                n = max(n, 5)
            if c.valu and ps & c.r:
                n = max(n, 4 if c.mn.startswith(("v_readlane", "v_writelane", "v_div_fmas")) else 2)
            if c.salu and ps & c.r:
                n = max(n, 1)
            if ("s", "exec") in ps:
                if c.dpp:
                    n = max(n, 5)
                if c.mfma or c.permlane or c.lanerd:
                    n = max(n, 4)
    if p.mn.startswith("v_dot") and (c.valu or c.mfma or c.ds or c.vmem) and _vec(p.w) & (c.r | c.w):
        if not (c.mn == p.mn and not (_vec(p.w) & (regs_of(c.ops[1]) | regs_of(c.ops[2])))):
            n = max(n, 3)
    if p.salu and ("s", "m0") in p.w and c.lds_dma:
        n = max(n, 1)
    if p.stdata and (c.valu or c.mfma) and p.stdata & c.w:
        n = max(n, 2)
    if p.stdata and (c.ds or c.vmem) and p.stdata & c.w:
        n = max(n, 1)
    if p.mfma:
        big = {4: 8, 8: 12}[p.passes]
        if c.mfma:
            if p.w & c.ab:
                n = max(n, big)
            if p.w & c.srcc and not (p.w == c.srcc and p.passes == c.passes):
                n = max(n, {4: 6, 8: 10}[p.passes])
            if p.w & c.w and not (p.w & c.srcc):
                n = max(n, {4: 6, 8: 10}[p.passes])
        elif (c.valu or c.ds or c.vmem) and p.w & (c.r | c.w):
            n = max(n, big)
        if c.valu and p.srcc & c.w:
            n = max(n, {4: 3, 8: 7}[p.passes])
    return n


MAXD = 12


class Kernel:
    def __init__(self, name):
        self.name = name
        self.lines = []

    def __call__(self, text):
        for ln in text.split("\n"):
            if ln.strip():
                self.lines.append(ln.strip())

    def _short(self, prev, c):
        miss, d = 0, 0
        for p in reversed(prev):
            if d >= MAXD:
                break
            miss = max(miss, need(p, c) - d)
            d += p.states()
        return miss

    def finalize(self):
        ins = [Ins(t) for t in self.lines]
        out = []
        hist = []
        nops = 0
        for c in ins:
            if c.real:
                m = self._short(hist, c)
                if m > 0:
                    n = Ins(f"s_nop {m - 1}")
                    out.append(n)
                    hist.append(n)
                    nops += 1
                hist.append(c)
                if c.mn in ("s_branch", "s_endpgm"):
                    hist = []
            out.append(c)
        labels = {c.label: i for i, c in enumerate(out) if c.label}
        for i, c in enumerate(out):
            if c.branch and c.branch in labels:
                prev = [p for p in out[max(0, i - 40):i + 1] if p.real]
                j = labels[c.branch]
                d = 0
                for t in out[j:]:
                    if not t.real:
                        continue
                    m = self._short(prev, t)
                    if m > 0:
                        raise RuntimeError(f"{self.name}: hazard across branch to {c.branch}: '{t.text}' short {m}")
                    prev.append(t)
                    d += t.states()
                    if d >= MAXD or t.mn in ("s_branch", "s_endpgm"):
                        break
        self.nops = nops
        self.maxv = max([r[1] for c in out for r in (c.r | c.w) if r[0] == "v"] + [0])
        self.maxa = max([r[1] for c in out for r in (c.r | c.w) if r[0] == "a"] + [-1])
        self.maxs = max([r[1] for c in out for r in (c.r | c.w) if r[0] == "s" and isinstance(r[1], int)] + [0])
        return "\n".join((c.text if c.label else "    " + c.text) for c in out) + "\n"

    def text(self):
        body = self.finalize()
        accum = (self.maxv + 1 + 3) // 4 * 4
        nfv = accum + self.maxa + 1 if self.maxa >= 0 else self.maxv + 1
        n = self.name
        head = f".globl {n}\n.p2align 8\n.type {n},@function\n{n}:\n"
        kd = f""".amdhsa_kernel {n}
  .amdhsa_next_free_vgpr {nfv}
  .amdhsa_next_free_sgpr {self.maxs + 1}
  .amdhsa_accum_offset {accum}
  .amdhsa_group_segment_fixed_size 0
  .amdhsa_kernarg_size 144
  .amdhsa_user_sgpr_count 2
  .amdhsa_user_sgpr_kernarg_segment_ptr 1
  .amdhsa_system_sgpr_workgroup_id_x 1
.end_amdhsa_kernel
"""
        self.nfv = nfv
        return head + body, kd


def interleave(main, fill, start=0, per=None):
    out = []
    n = len(main) - start
    rate = per if per is not None else (len(fill) / n if n else 0)
    k = 0
    for i, m in enumerate(main):
        out.append(m)
        if i >= start:
            while k < len(fill) and k < (i - start + 1) * rate - 1e-9:
                out.append(fill[k])
                k += 1
    out.extend(fill[k:])
    return out
```

```python
import sys, os, math, struct
sys.path.insert(0, os.path.dirname(os.path.abspath(__file__)))
from asmlib import Kernel, interleave

NAME = "adaLN_cond__ssm_conv_s4__glu_gated_bilinear__prompt"

KA_U, KA_ARE, KA_AIM, KA_BRE, KA_BIM, KA_CRE, KA_CIM, KA_LDT, KA_DSK = 0, 8, 16, 24, 32, 40, 48, 56, 64
KA_WG, KA_WU, KA_WD, KA_C, KA_WMOD, KA_OUT, KA_DBG, KA_WS = 80, 88, 96, 104, 112, 120, 128, 136

WS_XT = 0x000000
WS_X1T = 0x200000
WS_W1P = 0x400000
WS_ST1 = 0x780000
WS_MODB = 0x784000
WS_MODF = 0x786000
WS_CSB = 0x7A0000
WS_W2P = 0x800000
WS_HH = 0xA00000
WS_STAMP = 0x1200000

LOG2E = 1.4426950408889634


def fbits(x):
    return "0x%08x" % struct.unpack("<I", struct.pack("<f", x))[0]


class Opt:
    stamp = False


def stamp(k, n):
    if Opt.stamp:
        k(f"s_memrealtime s[{64 + 2 * n}:{65 + 2 * n}]")


def stamp_out(k, slot, ws, nst, vt):
    if not Opt.stamp:
        return
    k("s_waitcnt vmcnt(0)")
    stamp(k, nst - 1)
    k("s_waitcnt lgkmcnt(0)")
    k(f"s_mov_b64 exec, -1")
    k(f"s_lshl_b32 s62, s2, 6")
    k(f"s_add_u32 s62, s62, {WS_STAMP + slot * 0x10000}")
    k(f"v_cmp_eq_u32 vcc, 0, v0")
    k(f"s_and_saveexec_b64 s[60:61], vcc")
    k(f"s_cbranch_execz L_{k.name}_st{slot}_{vt}")
    k(f"v_mov_b32 v{vt}, s62")
    for i in range(nst):
        k(f"v_mov_b32 v{vt + 1}, s{64 + 2 * i}")
        k(f"global_store_dword v{vt}, v{vt + 1}, {ws} offset:{4 * i}")
    k(f"L_{k.name}_st{slot}_{vt}:")


def wave_allreduce(k, v, t):
    for r in (8, 4, 2, 1):
        k(f"v_add_f32_dpp v{v}, v{v}, v{v} row_ror:{r} row_mask:0xf bank_mask:0xf")
    k(f"v_mov_b32 v{t}, v{v}")
    k(f"v_permlane16_swap_b32 v{v}, v{t}")
    k(f"v_add_f32 v{v}, v{v}, v{t}")
    k(f"v_mov_b32 v{t}, v{v}")
    k(f"v_permlane32_swap_b32 v{v}, v{t}")
    k(f"v_add_f32 v{v}, v{v}, v{t}")


def unpack8(k, dst, src):
    for i in range(4):
        k(f"v_lshlrev_b32 v{dst + 2 * i}, 16, v{src + i}")
        k(f"v_and_b32 v{dst + 2 * i + 1}, 0xffff0000, v{src + i}")


def code_prefetch(k, va, vd, end_label, nthreads):
    k("s_getpc_b64 s[58:59]")
    k(f"L_{k.name}_pc:")
    k(f"v_lshlrev_b32 v{va}, 7, v0")
    k(f"v_min_u32 v{va}, {end_label}-L_{k.name}_pc-4, v{va}")
    k(f"global_load_dword v{vd}, v{va}, s[58:59]")


F1_XROW = 1088
F1_WT = 9216
F1_SIL = F1_WT + 16384
F1_PART = F1_SIL + 1024
F1_STAT = F1_PART + 512
F1_LDS = F1_STAT + 64


def gen_f1():
    k = Kernel("f1_kernel")
    stamp(k, 0)
    k(f"""
    s_cmp_ge_u32 s2, 256
    s_cbranch_scc1 L_f1_end
    s_load_dwordx2 s[4:5], s[0:1], {KA_U}
    s_load_dwordx4 s[8:11], s[0:1], {KA_C}
    s_load_dwordx2 s[12:13], s[0:1], {KA_WS}
    """)
    code_prefetch(k, 40, 41, "L_code_end", 512)
    k(f"""
    v_and_b32 v1, 63, v0
    v_lshrrev_b32 v2, 6, v0
    v_readfirstlane_b32 s14, v2
    s_lshl_b32 s15, s2, 13
    v_lshlrev_b32 v3, 4, v0
    v_add_u32 v3, s15, v3
    s_and_b32 s16, s2, 7
    s_mul_i32 s16, s16, 24
    s_lshr_b32 s17, s2, 3
    s_add_u32 s16, s16, s17
    v_lshrrev_b32 v16, 1, v1
    v_lshl_add_u32 v16, v2, 6, v16
    v_mul_u32_u24 v16, 6144, v16
    v_and_b32 v17, 1, v1
    v_lshl_add_u32 v16, v17, 4, v16
    s_lshl_b32 s17, s16, 5
    v_add_u32 v16, s17, v16
    v_add_u32 v17, {32 * 6144}, v16
    v_lshlrev_b32 v18, 1, v0
    s_lshl_b32 s18, s14, 11
    s_add_u32 s18, s18, {F1_WT}
    s_add_u32 s19, s18, 1024
    s_waitcnt lgkmcnt(0)
    global_load_dwordx4 v[4:7], v3, s[4:5]
    global_load_ushort v19, v18, s[8:9]
    s_cmp_ge_u32 s2, 192
    s_cbranch_scc1 L_f1_nomod_a
    s_mov_b32 m0, s18
    global_load_lds_dwordx4 v16, s[10:11]
    s_mov_b32 m0, s19
    global_load_lds_dwordx4 v17, s[10:11]
    s_waitcnt vmcnt(2)
    s_branch L_f1_a
    L_f1_nomod_a:
    s_waitcnt vmcnt(0)
    L_f1_a:
    """)
    stamp(k, 1)
    k(f"""
    v_mul_u32_u24 v20, {F1_XROW}, v2
    v_lshl_add_u32 v20, v1, 4, v20
    ds_write_b128 v20, v[4:7]
    v_lshlrev_b32 v19, 16, v19
    v_mul_f32 v21, {fbits(-LOG2E)}, v19
    v_exp_f32 v21, v21
    """)
    unpack8(k, 8, 4)
    k(f"""
    v_add_f32 v21, 1.0, v21
    v_rcp_f32 v21, v21
    v_add_f32 v22, v8, v9
    v_add_f32 v23, v10, v11
    v_mul_f32 v21, v19, v21
    v_cvt_pk_bf16_f32 v21, v21, v21
    ds_write_b16 v18, v21 offset:{F1_SIL}
    v_add_f32 v24, v12, v13
    v_add_f32 v25, v14, v15
    v_add_f32 v22, v22, v23
    v_add_f32 v24, v24, v25
    v_add_f32 v22, v22, v24
    """)
    wave_allreduce(k, 22, 23)
    k(f"v_mul_f32 v22, {fbits(1.0 / 512)}, v22")
    for i in range(8):
        k(f"v_sub_f32 v{8 + i}, v{8 + i}, v22")
    k("v_mul_f32 v24, v8, v8")
    k("v_mul_f32 v25, v9, v9")
    for i in range(2, 8):
        k(f"v_fmac_f32 v{24 + (i & 1)}, v{8 + i}, v{8 + i}")
    k("v_add_f32 v24, v24, v25")
    wave_allreduce(k, 24, 23)
    k(f"""
    v_mov_b32 v25, {fbits(1e-5)}
    v_fmac_f32 v25, {fbits(1.0 / 512)}, v24
    v_rsq_f32 v25, v25
    v_lshrrev_b32 v27, 1, v2
    v_lshlrev_b32 v27, 4, v27
    v_and_b32 v28, 1, v2
    v_lshl_add_u32 v27, v28, 2, v27
    v_mul_f32 v26, -v22, v25
    v_add_u32 v27, {F1_STAT}, v27
    ds_write2_b32 v27, v25, v26 offset0:0 offset1:2
    s_cmp_ge_u32 s2, 192
    s_cbranch_scc1 L_f1_nomod_b
    v_lshlrev_b32 v28, 3, v1
    v_add_u32 v28, s18, v28
    v_lshrrev_b32 v29, 4, v1
    v_lshlrev_b32 v29, 3, v29
    v_lshl_add_u32 v29, v2, 7, v29
    s_waitcnt vmcnt(0) lgkmcnt(0)
    ds_read_b64_tr_b16 v[8:9], v28
    ds_read_b64_tr_b16 v[10:11], v28 offset:512
    ds_read_b64 v[32:33], v29 offset:{F1_SIL}
    ds_read_b64 v[34:35], v29 offset:{F1_SIL + 32}
    ds_read_b64_tr_b16 v[12:13], v28 offset:1024
    ds_read_b64_tr_b16 v[14:15], v28 offset:1536
    ds_read_b64 v[36:37], v29 offset:{F1_SIL + 64}
    ds_read_b64 v[38:39], v29 offset:{F1_SIL + 96}
    v_lshlrev_b32 v28, 2, v1
    v_lshl_add_u32 v28, v2, 6, v28
    s_waitcnt lgkmcnt(4)
    v_mfma_f32_16x16x32_bf16 v[24:27], v[32:35], v[8:11], 0
    s_waitcnt lgkmcnt(0)
    v_mfma_f32_16x16x32_bf16 v[24:27], v[36:39], v[12:15], v[24:27]
    s_mov_b64 exec, 0xffff
    ds_write_b32 v28, v24 offset:{F1_PART}
    s_mov_b64 exec, -1
    L_f1_nomod_b:
    """)
    k(f"""
    v_bfe_u32 v28, v1, 2, 2
    v_mul_u32_u24 v28, {F1_XROW}, v28
    v_lshrrev_b32 v29, 4, v0
    v_lshl_add_u32 v28, v29, 5, v28
    v_and_b32 v29, 3, v1
    v_lshl_add_u32 v28, v29, 3, v28
    s_waitcnt lgkmcnt(0)
    s_barrier
    ds_read_b64_tr_b16 v[4:5], v28
    ds_read_b64_tr_b16 v[6:7], v28 offset:{4 * F1_XROW}
    s_cmp_eq_u32 s14, 1
    s_cbranch_scc1 L_f1_stat
    s_cmp_lg_u32 s14, 0
    s_cbranch_scc1 L_f1_fin
    s_cmp_ge_u32 s2, 192
    s_cbranch_scc1 L_f1_fin
    v_and_b32 v28, 15, v1
    v_lshlrev_b32 v29, 2, v28
    """)
    for i in range(8):
        k(f"ds_read_b32 v{8 + i}, v29 offset:{F1_PART + 64 * i}")
    k(f"""
    s_lshr_b32 s17, s16, 5
    s_cmp_eq_u32 s17, 1
    s_cselect_b32 s20, 1.0, 0
    s_cmp_eq_u32 s17, 4
    s_cselect_b32 s20, 1.0, s20
    s_lshl_b32 s17, s16, 4
    v_add_u32 v28, s17, v28
    v_lshlrev_b32 v29, 2, v28
    v_add_u32 v29, {WS_MODF}, v29
    v_lshlrev_b32 v28, 1, v28
    v_add_u32 v28, {WS_MODB}, v28
    s_waitcnt lgkmcnt(0)
    v_add_f32 v8, v8, v9
    v_add_f32 v10, v10, v11
    v_add_f32 v12, v12, v13
    v_add_f32 v14, v14, v15
    v_add_f32 v8, v8, v10
    v_add_f32 v12, v12, v14
    v_add_f32 v8, v8, v12
    v_cvt_pk_bf16_f32 v8, v8, v8
    v_lshlrev_b32 v8, 16, v8
    v_add_f32 v8, s20, v8
    v_cvt_pk_bf16_f32 v8, v8, v8
    v_lshlrev_b32 v9, 16, v8
    s_mov_b64 exec, 0xffff
    global_store_short v28, v8, s[12:13]
    global_store_dword v29, v9, s[12:13]
    s_mov_b64 exec, -1
    s_branch L_f1_fin
    L_f1_stat:
    v_and_b32 v28, 3, v1
    v_lshlrev_b32 v29, 4, v28
    ds_read_b128 v[8:11], v29 offset:{F1_STAT}
    v_lshlrev_b32 v28, 12, v28
    s_lshl_b32 s17, s2, 4
    s_add_u32 s17, s17, {WS_ST1}
    v_add_u32 v28, s17, v28
    s_waitcnt lgkmcnt(0)
    s_mov_b64 exec, 0xf
    global_store_dwordx4 v28, v[8:11], s[12:13]
    s_mov_b64 exec, -1
    L_f1_fin:
    s_waitcnt lgkmcnt(0)
    global_store_dwordx4 v3, v[4:7], s[12:13]
    """)
    stamp_out(k, 0, "s[12:13]", 3, 30)
    k("L_f1_end:")
    k("s_endpgm")
    return k


F2_HS = 0
F2_HSZ = 4608
F2_BASE = F2_HS + 2 * F2_HSZ
F2_KC = F2_BASE + 16384
F2_KCZ = 2816
F2_KR = F2_KC + 2 * F2_KCZ
F2_KRZ = 4160
F2_PRM = F2_KR + 4 * F2_KRZ
F2_LDS = F2_PRM + 4 * 3072
LAMBDA = [0, 1, 2, 3, 256, 258, 260, 262, 512, 516, 4, 5, 768, 772, 6, 7]


def ci_addr(k, dst, j, t):
    k(f"""
    v_max_i32 v{t}, 0, v{j}
    v_cvt_f32_u32 v{t}, v{t}
    v_cvt_pk_bf16_f32 v{t}, v{t}, v{t}
    v_lshrrev_b32 v{t}, 16, v{t}
    v_subrev_u32 v{t}, 0x4280, v{t}
    v_min_i32 v{dst}, 0x80, v{j}
    v_max_i32 v{dst}, v{dst}, v{t}
    v_ashrrev_i32 v{t}, 5, v{dst}
    v_add3_u32 v{dst}, v{dst}, v{t}, 2
    v_lshlrev_b32 v{dst}, 2, v{dst}
    """)


def cexp(k, dre, dim, al, be, lam, t):
    k(f"""
    v_mul_f32 v{t}, {fbits(lam)}, v{be}
    v_mul_f32 v{t + 1}, {fbits(lam)}, v{al}
    v_fract_f32 v{t}, v{t}
    v_exp_f32 v{t + 1}, v{t + 1}
    v_cos_f32 v{dre}, v{t}
    v_sin_f32 v{dim}, v{t}
    v_mul_f32 v{dre}, v{dre}, v{t + 1}
    v_mul_f32 v{dim}, v{dim}, v{t + 1}
    """)


def pk_cmul(d, a, b, conj_out=False):
    if conj_out:
        return [f"v_pk_mul_f32 v[{d}:{d+1}], v[{a}:{a+1}], v[{b}:{b+1}] op_sel:[0,0] op_sel_hi:[0,1] neg_hi:[0,1]",
                f"v_pk_fma_f32 v[{d}:{d+1}], v[{a}:{a+1}], v[{b}:{b+1}], v[{d}:{d+1}] op_sel:[1,1,0] op_sel_hi:[1,0,1] neg_lo:[0,1,0] neg_hi:[0,1,0]"]
    return [f"v_pk_mul_f32 v[{d}:{d+1}], v[{a}:{a+1}], v[{b}:{b+1}] op_sel:[0,0] op_sel_hi:[0,1]",
            f"v_pk_fma_f32 v[{d}:{d+1}], v[{a}:{a+1}], v[{b}:{b+1}], v[{d}:{d+1}] op_sel:[1,1,0] op_sel_hi:[1,0,1] neg_lo:[0,1,0]"]


def gen_f2_conv(k):
    k(f"""
    s_load_dwordx4 s[4:7], s[0:1], {KA_ARE}
    s_load_dwordx8 s[8:15], s[0:1], {KA_BRE}
    s_load_dwordx4 s[16:19], s[0:1], {KA_LDT}
    s_load_dwordx2 s[20:21], s[0:1], {KA_WS}
    v_and_b32 v1, 63, v0
    v_lshrrev_b32 v2, 6, v0
    v_readfirstlane_b32 s22, v2
    s_and_b32 s23, s2, 7
    s_lshl_b32 s23, s23, 5
    s_lshr_b32 s24, s2, 3
    s_add_u32 s23, s23, s24
    s_lshl_b32 s24, s23, 9
    v_lshlrev_b32 v3, 1, v0
    v_add_u32 v3, s24, v3
    s_lshl_b32 s24, s23, 5
    v_lshlrev_b32 v4, 13, v0
    v_add_u32 v4, s24, v4
    v_lshlrev_b32 v5, 4, v0
    v_add_u32 v6, {WS_ST1}, v5
    v_add_u32 v7, {WS_ST1 + 8192}, v5
    s_lshl_b32 s24, s23, 2
    s_lshl_b32 s25, s23, 3
    s_add_u32 s25, s25, {WS_MODF}
    s_add_u32 s26, s25, 2048
    s_add_u32 s27, s25, 4096
    s_waitcnt lgkmcnt(0)
    global_load_ushort v8, v3, s[4:5]
    global_load_ushort v9, v3, s[6:7]
    global_load_ushort v10, v3, s[8:9]
    global_load_ushort v11, v3, s[10:11]
    global_load_ushort v12, v3, s[12:13]
    global_load_ushort v13, v3, s[14:15]
    s_load_dword s28, s[16:17], s24
    s_load_dword s29, s[18:19], s24
    s_load_dwordx2 s[30:31], s[20:21], s25
    s_load_dwordx2 s[32:33], s[20:21], s26
    s_load_dwordx2 s[34:35], s[20:21], s27
    global_load_dwordx4 v[208:211], v4, s[20:21]
    global_load_dwordx4 v[212:215], v4, s[20:21] offset:16
    global_load_dwordx4 v[216:219], v6, s[20:21]
    global_load_dwordx4 v[220:223], v7, s[20:21] offset:-4096
    global_load_dwordx4 v[224:227], v7, s[20:21]
    v_add_u32 v7, 4096, v7
    global_load_dwordx4 v[228:231], v7, s[20:21]
    """)
    k(f"""
    v_mov_b32 v16, 0
    v_mov_b32 v17, 0
    v_mov_b32 v18, 0
    v_mov_b32 v19, 0
    ds_write_b128 v5, v[16:19] offset:{F2_KC}
    v_min_u32 v20, {2 * F2_KCZ - 4096 - 16}, v5
    ds_write_b128 v20, v[16:19] offset:{F2_KC + 4096}
    v_min_u32 v20, 464, v5
    ds_write_b128 v20, v[16:19] offset:{F2_HS}
    ds_write_b128 v20, v[16:19] offset:{F2_HS + F2_HSZ}
    v_and_b32 v20, 1, v1
    v_lshlrev_b32 v20, 4, v20
    v_mov_b32 v21, {F2_KRZ}
    v_mad_u32_u24 v20, v2, v21, v20
    ds_write_b128 v20, v[16:19] offset:{F2_KR + 4096}
    """)
    k("v_lshlrev_b32 v20, 3, v0")
    for e in range(9):
        k(f"v_sub_u32 v21, {2047 - e}, v20")
        ci_addr(k, 232 + e, 21, 22)
    lo = sum((LAMBDA[i] & 15) << (4 * i) for i in range(16))
    hi = sum((LAMBDA[i] >> 8) << (2 * i) for i in range(16))
    k(f"""
    v_and_b32 v14, 15, v1
    v_lshrrev_b32 v15, 4, v1
    s_mov_b32 s36, {lo & 0xffffffff}
    s_mov_b32 s37, {lo >> 32}
    s_mov_b32 s38, {hi}
    v_lshlrev_b32 v20, 2, v14
    v_lshrrev_b64 v[22:23], v20, s[36:37]
    v_and_b32 v22, 15, v22
    v_lshlrev_b32 v20, 1, v14
    v_bfe_u32 v21, s38, v20, 2
    v_lshl_add_u32 v21, v21, 8, v22
    v_cvt_f32_u32 v243, v21
    v_lshlrev_b32 v21, 3, v14
    v_cvt_f32_u32 v242, v21
    """)
    k(f"""
    s_lshr_b32 s39, s22, 1
    s_mul_i32 s40, s39, {F2_KCZ}
    s_add_u32 s40, s40, {F2_KC}
    v_lshl_add_u32 v24, v15, 8, v21
    """)
    ci_addr(k, 244, 24, 22)
    k("v_add_u32 v25, 0x80, v24")
    ci_addr(k, 245, 25, 22)
    k("v_add_u32 v25, 0x400, v24")
    ci_addr(k, 248, 25, 22)
    k(f"""
    v_lshlrev_b32 v24, 1, v15
    v_mov_b32 v25, 0x104
    v_max_u32 v24, 2, v24
    v_cmp_eq_u32 vcc, 1, v15
    v_cndmask_b32 v24, v24, v25, vcc
    v_add_u32 v24, v24, v21
    """)
    ci_addr(k, 246, 24, 22)
    k("v_add_u32 v25, 0x80, v24")
    ci_addr(k, 247, 25, 22)
    for r in range(244, 249):
        k(f"v_add_u32 v{r}, s40, v{r}")
    k(f"""
    s_mul_i32 s41, s22, 3072
    s_add_u32 s41, s41, {F2_PRM}
    v_mul_u32_u24 v249, 48, v1
    v_add_u32 v249, s41, v249
    v_mul_u32_u24 v250, 192, v15
    v_add_u32 v250, s41, v250
    v_cmp_eq_u32 vcc, 1, v14
    v_cndmask_b32 v251, 16, 32, vcc
    v_add_u32 v251, v250, v251
    s_waitcnt lgkmcnt(0)
    s_lshl_b32 s42, s39, 4
    s_lshr_b32 s28, s28, s42
    s_lshl_b32 s28, s28, 16
    v_mov_b32 v20, {fbits(LOG2E)}
    v_mul_f32 v20, s28, v20
    v_exp_f32 v20, v20
    s_barrier
    v_cvt_pk_bf16_f32 v20, v20, v20
    v_lshlrev_b32 v20, 16, v20
    v_mul_f32 v21, {fbits(LOG2E)}, v20
    v_mul_f32 v22, {fbits(1.0 / (2 * math.pi))}, v20
    s_waitcnt vmcnt(6)
    """)
    stamp(k, 1)
    for r in range(8, 14):
        k(f"v_lshlrev_b32 v{r}, 16, v{r}")
    k(f"""
    v_mul_f32 v24, v8, v21
    v_mul_f32 v25, v9, v22
    v_mul_f32 v10, v10, v20
    v_mul_f32 v11, v11, v20
    v_rndne_f32 v23, v25
    v_mul_f32 v26, v12, v10
    v_mul_f32 v27, v12, v11
    v_sub_f32 v25, v25, v23
    v_fma_f32 v26, -v13, v11, v26
    v_fma_f32 v27, v13, v10, v27
    ds_write_b128 v249, v[24:27]
    """)
    cexp(k, 36, 37, 24, 25, 128.0, 40)
    cexp(k, 30, 31, 24, 25, 1024.0, 42)
    cexp(k, 34, 35, 24, 25, 2047.0, 44)
    for x in pk_cmul(28, 26, 36):
        k(x)
    k(f"""
    v_mov_b32 v32, v28
    v_mov_b32 v33, v29
    ds_write_b128 v249, v[28:31] offset:16
    ds_write_b128 v249, v[32:35] offset:32
    s_waitcnt lgkmcnt(0)
    """)
    R = 64

    def rec_reads(kap):
        out = []
        for s in range(4):
            b = R + 32 * (kap & 1) + 8 * s
            out.append(f"ds_read_b128 v[{b}:{b+3}], v250 offset:{768 * kap + 48 * s}")
            out.append(f"ds_read_b128 v[{b+4}:{b+7}], v251 offset:{768 * kap + 48 * s}")
        return out

    for x in rec_reads(0):
        k(x)
    for kap in range(4):
        steps = [[] for _ in range(21)]
        for s in range(4):
            b = R + 32 * (kap & 1) + 8 * s
            t = 16 + 12 * s
            T, U, Y, X, P, Q = t, t + 2, t + 4, t + 6, t + 8, t + 10
            seq = [
                f"v_pk_mul_f32 v[{U}:{U+1}], v[{b}:{b+1}], v[242:243] op_sel:[0,1] op_sel_hi:[1,1]",
                f"v_pk_mul_f32 v[{T}:{T+1}], v[{b}:{b+1}], v[242:243] op_sel:[0,0] op_sel_hi:[1,0]",
                f"v_fract_f32 v{U+1}, v{U+1}",
                f"v_exp_f32 v{T}, v{T}",
                f"v_cos_f32 v{Y}, v{T+1}",
                f"v_sin_f32 v{Y+1}, v{T+1}",
                f"v_exp_f32 v{U}, v{U}",
                f"v_cos_f32 v{X}, v{U+1}",
                f"v_sin_f32 v{X+1}, v{U+1}",
                f"v_pk_mul_f32 v[{Y}:{Y+1}], v[{Y}:{Y+1}], v[{T}:{T+1}] op_sel:[0,0] op_sel_hi:[1,0]",
                f"v_pk_mul_f32 v[{X}:{X+1}], v[{X}:{X+1}], v[{U}:{U+1}] op_sel:[0,0] op_sel_hi:[1,0]",
            ]
            ya = pk_cmul(P, Y, b + 2, True)
            yb = pk_cmul(Q, Y, b + 4, True)
            xb = pk_cmul(T, X, b + 6)
            seq += [ya[0], yb[0], xb[0], ya[1], yb[1], xb[1]]
            seq += [f"v_cvt_pk_bf16_f32 v{192 + s}, v{X}, v{X+1}",
                    f"v_cvt_pk_bf16_f32 v{200 + s}, v{P}, v{P+1}",
                    f"v_cvt_pk_bf16_f32 v{204 + s}, v{Q}, v{Q+1}",
                    f"v_cvt_pk_bf16_f32 v{196 + s}, v{T}, v{T+1}"]
            for i, x in enumerate(seq):
                steps[i].append(x)
        flat = [x for st in steps for x in st]
        k("s_waitcnt lgkmcnt(0)")
        if kap < 3:
            flat = interleave(flat, rec_reads(kap + 1), start=4, per=0.5)
        for x in flat:
            k(x)
        c = lambda i: "0" if kap == 0 else f"v[{128+4*i}:{131+4*i}]"
        k(f"v_mfma_f32_16x16x32_bf16 v[128:131], v[192:195], v[200:203], {c(0)}")
        k(f"v_mfma_f32_16x16x32_bf16 v[132:135], v[192:195], v[204:207], {c(1)}")
        k(f"v_mfma_f32_16x16x32_bf16 v[136:139], v[196:199], v[200:203], {c(2)}")
        k(f"v_mfma_f32_16x16x32_bf16 v[140:143], v[196:199], v[204:207], {c(3)}")
    stamp(k, 2)
    k(f"""
    v_mov_b32 v22, s34
    v_mov_b32 v23, s35
    v_mul_f32 v16, s32, v22
    v_mul_f32 v17, s30, v22
    v_mul_f32 v18, s33, v23
    v_mul_f32 v19, s31, v23
    s_lshl_b32 s43, s29, 16
    s_and_b32 s44, s29, 0xffff0000
    v_mov_b32 v20, s43
    v_mov_b32 v21, s44
    v_mov_b32 v241, s40
    ds_add_f32 v244, v128
    ds_add_f32 v244, v129 offset:4
    ds_add_f32 v246, v130
    ds_add_f32 v246, v131 offset:4
    ds_add_f32 v245, v132
    ds_add_f32 v245, v133 offset:4
    ds_add_f32 v247, v134
    ds_add_f32 v247, v135 offset:4
    ds_add_f32 v248, v136
    ds_add_f32 v248, v140 offset:64
    s_mov_b64 exec, 1
    ds_add_f32 v241, v137 offset:{4 * (640 + 20 + 2)}
    s_mov_b64 exec, -1
    v_lshlrev_b32 v22, 5, v0
    s_waitcnt vmcnt(0)
    """)
    for ch in range(2):
        unpack8(k, 24, 208 + 4 * ch)
        cs = 16 + 2 * ch
        for q in range(4):
            st = 216 + 4 * q
            k(f"v_pk_fma_f32 v[{32+2*q}:{33+2*q}], v[{24+2*q}:{25+2*q}], v[{st}:{st+1}], v[{st+2}:{st+3}]")
        for q in range(4):
            k(f"v_pk_fma_f32 v[{32+2*q}:{33+2*q}], v[{32+2*q}:{33+2*q}], v[{cs}:{cs+1}], v[{cs}:{cs+1}] op_sel:[0,0,1] op_sel_hi:[1,0,1]")
        for q in range(4):
            k(f"v_pk_fma_f32 v[{24+2*q}:{25+2*q}], v[{32+2*q}:{33+2*q}], v[20:21], v[{24+2*q}:{25+2*q}] op_sel:[0,{ch},0] op_sel_hi:[1,{ch},1]")
        for q in range(4):
            k(f"v_cvt_pk_bf16_f32 v{40+q}, v{32+2*q}, v{33+2*q}")
        k(f"ds_write_b128 v22, v[24:27] offset:{F2_BASE + 8192 * ch}")
        k(f"ds_write_b128 v22, v[28:31] offset:{F2_BASE + 8192 * ch + 16}")
        k(f"ds_write_b128 v5, v[40:43] offset:{F2_HS + F2_HSZ * ch + 480}")
    k("s_waitcnt lgkmcnt(0)")
    k("s_barrier")
    for ch in range(2):
        for e in range(9):
            k(f"ds_read_b32 v{16 + 10 * ch + e}, v{232 + e} offset:{F2_KC + F2_KCZ * ch}")
        if ch == 0:
            k(f"""
            s_and_b32 s45, s22, 1
            v_sub_u32 v56, 15, v14
            v_lshrrev_b32 v57, 1, v56
            v_lshl_add_u32 v57, v15, 2, v57
            v_lshlrev_b32 v57, 2, v57
            v_and_b32 v56, 1, v56
            v_mov_b32 v58, {F2_KRZ}
            v_mad_u32_u24 v57, v56, v58, v57
            s_mul_i32 s46, s39, {2 * F2_KRZ}
            s_lshl_b32 s47, s45, 8
            s_add_u32 s46, s46, s47
            s_add_u32 s46, s46, {F2_KR}
            v_add_u32 v60, s46, v57
            v_add_u32 v61, 1024, v60
            v_add_u32 v62, 2048, v60
            v_add_u32 v63, 3072, v60
            s_mul_i32 s46, s39, {F2_HSZ}
            s_add_u32 s46, s46, s47
            v_lshlrev_b32 v58, 5, v14
            v_lshl_add_u32 v58, v15, 4, v58
            v_add_u32 v58, s46, v58
            s_lshl_b32 s46, s22, 12
            s_add_u32 s46, s46, {F2_BASE}
            v_lshlrev_b32 v59, 6, v14
            v_lshl_add_u32 v59, v15, 4, v59
            v_add_u32 v59, s46, v59
            """)
    for ch in range(2):
        k(f"s_waitcnt lgkmcnt({9 if ch == 0 else 2})")
        b = 16 + 10 * ch
        for q in range(4):
            k(f"v_cvt_pk_bf16_f32 v{40 + 8 * ch + q}, v{b + 2*q}, v{b + 2*q + 1}")
        for q in range(4):
            k(f"v_cvt_pk_bf16_f32 v{44 + 8 * ch + q}, v{b + 2*q + 1}, v{b + 2*q + 2}")
        k(f"ds_write_b128 v5, v[{40 + 8*ch}:{43 + 8*ch}] offset:{F2_KR + 2 * F2_KRZ * ch}")
        k(f"ds_write_b128 v5, v[{44 + 8*ch}:{47 + 8*ch}] offset:{F2_KR + 2 * F2_KRZ * ch + F2_KRZ}")
    ACC = 16
    k("s_cmp_eq_u32 s45, 0")
    k("s_waitcnt lgkmcnt(0)")
    k("s_cbranch_scc0 L_f2_init1")
    for q in range(4):
        k(f"ds_read_b128 v[{ACC+4*q}:{ACC+4*q+3}], v59 offset:{1024*q}")
    for r in range(16):
        k(f"v_mov_b32 v{ACC + 16 + r}, 0")
    k("s_branch L_f2_init2")
    k("L_f2_init1:")
    for q in range(4):
        k(f"ds_read_b128 v[{ACC+16+4*q}:{ACC+16+4*q+3}], v59 offset:{1024*q}")
    for r in range(16):
        k(f"v_mov_b32 v{ACC + r}, 0")
    k("L_f2_init2:")
    k("s_barrier")
    stamp(k, 3)

    def frag_reads(rr):
        base = 64 + 64 * (rr & 1)
        a, b = [], []
        for i in range(8):
            ra = base + 4 * i
            m = 7 - i
            off = 16 * rr + 128 * (m & 1)
            a.append([f"ds_read2_b32 v[{ra}:{ra+1}], v{60 + (m >> 1)} offset0:{off} offset1:{off+1}",
                      f"ds_read2_b32 v[{ra+2}:{ra+3}], v{60 + (m >> 1)} offset0:{off+2} offset1:{off+3}"])
            rb = base + 32 + 4 * i
            b.append([f"ds_read_b128 v[{rb}:{rb+3}], v58 offset:{F2_HS + 64 * rr + 512 * i}"])
        out = []
        for i in range(8):
            out += a[i] + b[i]
        return out

    def mfmas(rr):
        base = 64 + 64 * (rr & 1)
        groups = []
        for n in range(8):
            g = []
            for i in range(n + 1):
                for (ia, ib) in {(n, i), (i, n)}:
                    if ia + ib <= 7:
                        q = ia + ib
                        g.append(f"v_mfma_f32_16x16x32_bf16 v[{ACC+4*q}:{ACC+4*q+3}], v[{base+4*ia}:{base+4*ia+3}], v[{base+32+4*ib}:{base+32+4*ib+3}], v[{ACC+4*q}:{ACC+4*q+3}]")
            groups.append(g)
        return groups

    first = frag_reads(0)
    for x in first[:12]:
        k(x)
    g0 = mfmas(0)
    rest = first[12:] + frag_reads(1)
    issued, pos = 12, 0
    for n in range(8):
        k(f"s_waitcnt lgkmcnt({min(15, issued - 3 * (n + 1))})")
        for m in g0[n]:
            k(m)
            if pos < len(rest):
                k(rest[pos])
                pos += 1
                issued += 1
    for x in rest[pos:]:
        k(x)
    for rr in range(1, 4):
        k("s_waitcnt lgkmcnt(0)")
        mm = [m for g in mfmas(rr) for m in g]
        if rr < 3:
            mm = interleave(mm, frag_reads(rr + 1), per=1.0)
        for x in mm:
            k(x)
    stamp(k, 4)
    k(f"""
    s_lshl_b32 s46, s23, 1
    s_add_u32 s46, s46, s39
    s_and_b32 s47, s46, 7
    s_lshl_b32 s46, s46, 8
    s_lshl_b32 s48, s45, 20
    s_add_u32 s46, s46, s48
    s_add_u32 s46, s46, {WS_X1T}
    v_and_b32 v56, 7, v14
    v_xor_b32 v56, s47, v56
    v_lshlrev_b32 v56, 5, v56
    v_lshl_add_u32 v56, v15, 3, v56
    v_lshrrev_b32 v57, 3, v14
    v_lshl_add_u32 v56, v57, 17, v56
    v_add_u32 v56, s46, v56
    s_lshl_b32 s46, s22, 12
    s_add_u32 s46, s46, {F2_BASE}
    v_lshlrev_b32 v57, 4, v1
    v_add_u32 v58, s46, v57
    s_xor_b32 s46, s22, 1
    s_lshl_b32 s46, s46, 12
    s_add_u32 s46, s46, {F2_BASE}
    v_add_u32 v59, s46, v57
    s_cmp_eq_u32 s45, 0
    s_cbranch_scc0 L_f2_x1
    """)
    for q in range(4):
        k(f"ds_write_b128 v58, v[{ACC+16+4*q}:{ACC+16+4*q+3}] offset:{1024*q}")
    k("s_branch L_f2_x2")
    k("L_f2_x1:")
    for q in range(4):
        k(f"ds_write_b128 v58, v[{ACC+4*q}:{ACC+4*q+3}] offset:{1024*q}")
    k("s_waitcnt lgkmcnt(0)")
    for r in range(8):
        k(f"v_pk_mov_b32 v[{ACC+2*r}:{ACC+2*r+1}], v[{ACC+16+2*r}:{ACC+17+2*r}], v[{ACC+16+2*r}:{ACC+17+2*r}] op_sel:[0,1]")
    k("L_f2_x2:")
    k("s_waitcnt lgkmcnt(0)")
    k("s_barrier")
    for q in range(4):
        k(f"ds_read_b128 v[{64+4*q}:{67+4*q}], v59 offset:{1024*q}")
    for q in range(4):
        k(f"s_waitcnt lgkmcnt({3 - q})")
        k(f"v_pk_add_f32 v[{ACC+4*q}:{ACC+4*q+1}], v[{ACC+4*q}:{ACC+4*q+1}], v[{64+4*q}:{65+4*q}]")
        k(f"v_pk_add_f32 v[{ACC+4*q+2}:{ACC+4*q+3}], v[{ACC+4*q+2}:{ACC+4*q+3}], v[{66+4*q}:{67+4*q}]")
        k(f"v_cvt_pk_bf16_f32 v{80+2*q}, v{ACC+4*q}, v{ACC+4*q+1}")
        k(f"v_cvt_pk_bf16_f32 v{81+2*q}, v{ACC+4*q+2}, v{ACC+4*q+3}")
        k(f"global_store_dwordx2 v56, v[{80+2*q}:{81+2*q}], s[20:21]")
        if q < 3:
            k(f"v_add_u32 v56, 0x40000, v56")
    stamp_out(k, 1, "s[20:21]", 6, 90)
    k("s_endpgm")


P_S1 = 4160
P_W2 = 4 * P_S1


def gen_f2_prep(k):
    k(f"""
    s_load_dwordx4 s[4:7], s[0:1], {KA_WG}
    s_load_dwordx2 s[8:9], s[0:1], {KA_WD}
    s_load_dwordx2 s[20:21], s[0:1], {KA_WS}
    v_and_b32 v1, 63, v0
    v_lshrrev_b32 v2, 6, v0
    v_readfirstlane_b32 s22, v2
    s_sub_u32 s10, s2, 256
    s_and_b32 s11, s10, 7
    s_lshr_b32 s12, s10, 3
    s_and_b32 s13, s11, 3
    s_lshr_b32 s14, s11, 2
    s_mul_i32 s14, s14, 28
    s_add_u32 s14, s14, s12
    s_mul_i32 s15, s13, {128 * 3584}
    s_lshl_b32 s16, s14, 6
    s_add_u32 s15, s15, s16
    v_lshrrev_b32 v3, 2, v0
    v_and_b32 v4, 3, v0
    v_mul_u32_u24 v5, 3584, v3
    v_lshl_add_u32 v5, v4, 4, v5
    v_add_u32 v5, s15, v5
    v_add_u32 v6, {64 * 3584}, v5
    s_lshl_b32 s15, s12, 16
    s_lshl_b32 s16, s11, 7
    s_add_u32 s15, s15, s16
    v_lshrrev_b32 v7, 3, v0
    v_lshlrev_b32 v7, 10, v7
    v_and_b32 v8, 7, v0
    v_lshl_add_u32 v7, v8, 4, v7
    v_add_u32 v7, s15, v7
    v_add_u32 v8, 0x8000, v7
    s_lshl_b32 s17, s22, 10
    s_add_u32 s17, s17, {P_W2}
    s_add_u32 s18, s17, 4096
    v_lshrrev_b32 v15, 4, v1
    s_lshl_b32 s15, s13, 8
    s_add_u32 s15, s15, {WS_MODB + 3 * 1024}
    v_lshlrev_b32 v9, 3, v15
    v_add_u32 v9, s15, v9
    s_lshl_b32 s15, s13, 9
    s_add_u32 s15, s15, {WS_MODF + 4 * 2048}
    v_lshlrev_b32 v10, 4, v15
    v_add_u32 v10, s15, v10
    s_waitcnt lgkmcnt(0)
    global_load_dwordx4 v[16:19], v5, s[4:5]
    global_load_dwordx4 v[20:23], v5, s[6:7]
    global_load_dwordx4 v[24:27], v6, s[4:5]
    global_load_dwordx4 v[28:31], v6, s[6:7]
    s_mov_b32 m0, s17
    global_load_lds_dwordx4 v7, s[8:9]
    s_mov_b32 m0, s18
    global_load_lds_dwordx4 v8, s[8:9]
    """)
    for i in range(8):
        k(f"global_load_dwordx2 v[{48+2*i}:{49+2*i}], v9, s[20:21] offset:{32*i}")
    for i in range(8):
        k(f"global_load_dwordx4 v[{64+4*i}:{67+4*i}], v10, s[20:21] offset:{64*i}")
    k(f"""
    v_mul_u32_u24 v11, {P_S1}, v4
    v_lshl_add_u32 v11, v3, 5, v11
    s_mul_i32 s15, s22, {P_S1}
    v_lshlrev_b32 v12, 3, v1
    v_add_u32 v12, s15, v12
    v_bfe_u32 v13, v1, 2, 2
    v_lshlrev_b32 v13, 7, v13
    v_and_b32 v114, 3, v1
    v_lshl_add_u32 v13, v114, 4, v13
    v_and_b32 v114, 1, v15
    v_lshl_add_u32 v13, v114, 3, v13
    v_lshrrev_b32 v114, 1, v15
    v_lshl_add_u32 v13, v114, 6, v13
    s_lshl_b32 s15, s22, 11
    s_add_u32 s15, s15, {P_W2}
    v_add_u32 v13, s15, v13
    s_lshl_b32 s15, s14, 2
    s_add_u32 s15, s15, s22
    s_mul_i32 s16, s15, 4682
    s_lshr_b32 s16, s16, 16
    s_mul_i32 s19, s16, {16 * 14 - 14}
    s_add_u32 s19, s19, s15
    s_mul_i32 s23, s13, 56
    s_add_u32 s19, s19, s23
    s_lshl_b32 s19, s19, 10
    s_add_u32 s19, s19, {WS_W1P}
    v_lshlrev_b32 v14, 4, v1
    v_add_u32 v112, {WS_W2P}, v14
    v_add_u32 v14, s19, v14
    s_mul_i32 s19, s11, 224
    s_lshl_b32 s23, s12, 3
    s_add_u32 s19, s19, s23
    s_lshl_b32 s23, s22, 1
    s_add_u32 s19, s19, s23
    s_lshl_b32 s19, s19, 10
    v_add_u32 v112, s19, v112
    s_lshl_b32 s15, s15, 9
    s_lshl_b32 s23, s13, 7
    s_add_u32 s15, s15, s23
    s_add_u32 s15, s15, {WS_CSB}
    v_lshlrev_b32 v113, 4, v15
    v_add_u32 v113, s15, v113
    v_mov_b32 v116, 0x3f803f80
    v_mov_b32 v117, 0x3f803f80
    v_mov_b32 v118, 0x3f803f80
    v_mov_b32 v119, 0x3f803f80
    """)
    for p in range(2):
        k(f"s_waitcnt vmcnt({20 - 2 * p})")
        g, u = 16 + 8 * p, 20 + 8 * p
        for h in range(2):
            k(f"v_pk_mov_b32 v[{32+4*h}:{33+4*h}], v[{g+2*h}:{g+2*h+1}], v[{u+2*h}:{u+2*h+1}] op_sel:[0,0]")
            k(f"v_pk_mov_b32 v[{34+4*h}:{35+4*h}], v[{g+2*h}:{g+2*h+1}], v[{u+2*h}:{u+2*h+1}] op_sel:[1,1]")
        k(f"ds_write_b128 v11, v[32:35] offset:{2048 * p}")
        k(f"ds_write_b128 v11, v[36:39] offset:{2048 * p + 16}")
        k("s_waitcnt lgkmcnt(0)")
    k("s_waitcnt vmcnt(16)")
    k("s_barrier")
    stamp(k, 1)
    for s in range(4):
        for j in range(2):
            k(f"ds_read_b64_tr_b16 v[{16+4*s+2*j}:{17+4*s+2*j}], v12 offset:{1024*s + 512*j}")
    for f in range(2):
        for j in range(2):
            k(f"ds_read_b64_tr_b16 v[{96+4*f+2*j}:{97+4*f+2*j}], v13 offset:{1024*f + 512*j}")
    k("s_waitcnt lgkmcnt(0)")
    k("global_store_dwordx4 v112, v[96:99], s[20:21]")
    k("global_store_dwordx4 v112, v[100:103], s[20:21] offset:1024")
    k("s_waitcnt vmcnt(2)")
    for s in range(4):
        w = 16 + 4 * s
        c = "0" if s == 0 else "v[108:111]"
        k(f"v_mfma_f32_16x16x32_bf16 v[108:111], v[{w}:{w+3}], v[{48+4*s}:{51+4*s}], {c}")
        unpack8(k, 32, w)
        for q in range(4):
            k(f"v_pk_mul_f32 v[{32+2*q}:{33+2*q}], v[{32+2*q}:{33+2*q}], v[{64+8*s+2*q}:{65+8*s+2*q}]")
        o = 40 + 4 * (s & 1)
        for q in range(4):
            k(f"v_cvt_pk_bf16_f32 v{o+q}, v{32+2*q}, v{33+2*q}")
        c = "0" if s == 0 else "v[104:107]"
        k(f"v_mfma_f32_16x16x32_bf16 v[104:107], v[{o}:{o+3}], v[116:119], {c}")
        k(f"global_store_dwordx4 v14, v[{o}:{o+3}], s[20:21]")
        if s < 3:
            k(f"v_add_u32 v14, {14 * 1024}, v14")
    k(f"""
    s_mov_b32 s24, 0x00010001
    s_mov_b32 s25, 0x00010001
    s_mov_b64 exec, s[24:25]
    global_store_dwordx4 v113, v[104:107], s[20:21]
    global_store_dwordx4 v113, v[108:111], s[20:21] offset:64
    """)
    stamp_out(k, 1, "s[20:21]", 6, 120)


def gen_f2():
    k = Kernel("f2_kernel")
    stamp(k, 0)
    k("s_cmp_ge_u32 s2, 480")
    k("s_cbranch_scc1 L_f2_end")
    k("s_cmp_ge_u32 s2, 256")
    k("s_cbranch_scc1 L_f2_prep")
    gen_f2_conv(k)
    k("L_f2_prep:")
    gen_f2_prep(k)
    k("L_f2_end:")
    k("s_endpgm")
    return k


G1_SLOT = 45056
G1_TAB = 3 * G1_SLOT
G1_ST = G1_TAB + 1792
G1_LDS = G1_ST + 1024


def gen_g1():
    k = Kernel("g1_kernel")
    ACC = 16
    GR = 128
    FR = 144
    ONE = 232
    stamp(k, 0)
    k(f"""
    s_cmp_ge_u32 s2, 256
    s_cbranch_scc1 L_g1_end
    s_load_dwordx2 s[4:5], s[0:1], {KA_WS}
    v_and_b32 v1, 63, v0
    v_lshrrev_b32 v2, 6, v0
    v_readfirstlane_b32 s22, v2
    s_and_b32 s6, s2, 7
    s_lshr_b32 s7, s2, 3
    s_and_b32 s16, s6, 1
    s_lshl_b32 s16, s16, 3
    s_and_b32 s17, s7, 7
    s_add_u32 s16, s16, s17
    s_lshr_b32 s17, s6, 1
    s_lshl_b32 s17, s17, 2
    s_lshr_b32 s7, s7, 3
    s_add_u32 s17, s17, s7
    s_lshl_b32 s18, s16, 17
    s_add_u32 s18, s18, {WS_X1T}
    s_mul_i32 s19, s17, {16 * 14 * 1024}
    s_add_u32 s19, s19, {WS_W1P}
    v_lshlrev_b32 v3, 4, v1
    v_lshl_add_u32 v4, v2, 12, v3
    v_mul_u32_u24 v5, 7168, v2
    v_add_u32 v5, v5, v3
    v_add_u32 v6, 4096, v5
    v_min_u32 v7, 111, v0
    v_lshrrev_b32 v8, 3, v7
    v_lshlrev_b32 v8, 9, v8
    v_and_b32 v9, 7, v7
    v_lshl_add_u32 v8, v9, 4, v8
    s_mul_i32 s20, s17, 7168
    s_add_u32 s20, s20, {WS_CSB}
    v_add_u32 v8, s20, v8
    s_lshl_b32 s23, s22, 12
    s_mul_i32 s24, s22, 7168
    s_add_u32 s24, s24, 16384
    s_mov_b32 s10, 131072
    s_mov_b32 s11, 0x20000
    s_mov_b32 s14, {16 * 14 * 1024}
    s_mov_b32 s15, 0x20000
    s_mov_b32 s26, 0
    s_mov_b32 s27, 0
    s_mov_b32 s28, 0
    s_waitcnt lgkmcnt(0)
    s_add_u32 s8, s4, s18
    s_addc_u32 s9, s5, 0
    s_add_u32 s12, s4, s19
    s_addc_u32 s13, s5, 0
    """)
    for i in range(4):
        k(f"global_load_dwordx4 v[{FR+4*i}:{FR+4*i+3}], v8, s[4:5] offset:{128*i}")

    def dma():
        out = ["s_add_u32 m0, s28, s23"]
        out += [f"buffer_load_dwordx4 v4, s[8:11], s26 offen offset:{1024*i} lds" for i in range(4)]
        out += ["s_add_u32 m0, s28, s24"]
        out += [f"buffer_load_dwordx4 v5, s[12:15], s27 offen offset:{1024*i} lds" for i in range(4)]
        out += ["s_add_u32 m0, m0, 4096"]
        out += [f"buffer_load_dwordx4 v6, s[12:15], s27 offen offset:{1024*i} lds" for i in range(3)]
        out += ["s_add_u32 s26, s26, 16384", "s_add_u32 s27, s27, 28672",
                f"s_add_u32 s28, s28, {G1_SLOT}", f"s_cmp_eq_u32 s28, {3 * G1_SLOT}", "s_cselect_b32 s28, 0, s28"]
        return out

    for st in range(3):
        for x in dma():
            k(x)
    k(f"""
    s_lshr_b32 s29, s22, 1
    s_and_b32 s30, s22, 1
    s_lshl_b32 s31, s29, 2
    s_lshl_b32 s32, s30, 1
    s_or_b32 s31, s31, s32
    v_lshrrev_b32 v9, 2, v1
    v_and_b32 v14, 7, v9
    v_xor_b32 v14, s31, v14
    v_lshlrev_b32 v9, 8, v9
    v_and_b32 v15, 3, v1
    v_lshl_add_u32 v9, v15, 3, v9
    """)
    for u in range(4):
        k(f"v_xor_b32 v15, {u}, v14")
        k(f"v_lshl_add_u32 v{10+u}, v15, 5, v9")
    k(f"""
    s_mul_i32 s32, s30, 7168
    s_add_u32 s32, s32, 16384
    v_add_u32 v14, s32, v3
    """)
    for r in range(ACC, GR + 16):
        k(f"v_mov_b32 v{r}, 0")
    for r in range(4):
        k(f"v_mov_b32 v{ONE + r}, 0x3f803f80")
    k("v_lshlrev_b32 v7, 4, v7")
    k(f"v_add_u32 v7, {G1_TAB}, v7")
    k("s_waitcnt vmcnt(33)")
    for h in range(2):
        k(f"v_pk_add_f32 v[{FR+2*h}:{FR+2*h+1}], v[{FR+2*h}:{FR+2*h+1}], v[{FR+4+2*h}:{FR+5+2*h}]")
        k(f"v_pk_add_f32 v[{FR+8+2*h}:{FR+9+2*h}], v[{FR+8+2*h}:{FR+9+2*h}], v[{FR+12+2*h}:{FR+13+2*h}]")
    for h in range(2):
        k(f"v_pk_add_f32 v[{FR+2*h}:{FR+2*h+1}], v[{FR+2*h}:{FR+2*h+1}], v[{FR+8+2*h}:{FR+9+2*h}]")
    k(f"ds_write_b128 v7, v[{FR}:{FR+3}]")

    def reads(st, ks):
        b = FR + 44 * st
        xs, wsr = [], []
        for u in range(4):
            for j in range(2):
                xs.append(f"ds_read_b64_tr_b16 v[{b+4*u+2*j}:{b+4*u+2*j+1}], v{10+u} offset:{8192*ks + 4096*j}")
        for i in range(7):
            wsr.append(f"ds_read_b128 v[{b+16+4*i}:{b+19+4*i}], v14 offset:{14336*ks + 1024*i}")
        return wsr[:1] + xs + wsr[1:]

    def mf(st):
        b = FR + 44 * st
        out = []
        for i in range(7):
            for u in range(4):
                a = ACC + 16 * i + 4 * u
                out.append(f"v_mfma_f32_16x16x32_bf16 v[{a}:{a+3}], v[{b+16+4*i}:{b+19+4*i}], v[{b+4*u}:{b+4*u+3}], v[{a}:{a+3}]")
        for u in range(2):
            x = f"v[{b+4*u}:{b+4*u+3}]"
            out.append(f"v_mfma_f32_16x16x32_bf16 v[{GR+4*u}:{GR+4*u+3}], {x}, {x}, v[{GR+4*u}:{GR+4*u+3}]")
            out.append(f"v_mfma_f32_16x16x32_bf16 v[{GR+8+4*u}:{GR+11+4*u}], v[{ONE}:{ONE+3}], {x}, v[{GR+8+4*u}:{GR+11+4*u}]")
        return out

    k("s_waitcnt vmcnt(22) lgkmcnt(0)")
    k("s_barrier")
    stamp(k, 1)
    for x in reads(0, 0):
        k(x)
    k("s_mov_b32 s33, 0")
    k("s_mov_b32 s34, 0")
    k("s_waitcnt lgkmcnt(0)")
    k("L_g1_loop:")
    adv = [f"s_add_u32 s34, s34, {G1_SLOT}", f"s_cmp_eq_u32 s34, {3 * G1_SLOT}",
           f"s_cselect_b32 s35, {-2 * G1_SLOT & 0xffffffff}, s36", "s_cselect_b32 s34, 0, s34"]
    adv += [f"v_add_u32 v{r}, s35, v{r}" for r in range(10, 15)]
    body = interleave(mf(0), [f"s_mov_b32 s36, {G1_SLOT}"] + reads(1, 1) + adv, per=1.0)
    for x in body:
        k(x)
    k("s_waitcnt vmcnt(11) lgkmcnt(0)")
    k("s_barrier")
    d = dma()
    rd = reads(0, 0)
    fill = []
    while d or rd:
        if rd:
            fill.append(rd.pop(0))
        if d:
            fill.append(d.pop(0))
    fill += ["s_add_u32 s33, s33, 1", "s_cmp_lt_u32 s33, 8"]
    body = interleave(mf(1), fill, per=1.25)
    for x in body:
        k(x)
    k("s_waitcnt lgkmcnt(0)")
    k("s_cbranch_scc1 L_g1_loop")
    stamp(k, 2)
    k(f"""
    v_and_b32 v4, 15, v1
    v_lshrrev_b32 v5, 4, v1
    v_and_b32 v6, 3, v1
    v_bfe_u32 v7, v1, 2, 2
    s_lshl_b32 s36, s31, 7
    s_add_u32 s36, s36, {G1_ST}
    v_lshlrev_b32 v8, 3, v4
    v_add_u32 v9, s36, v8
    v_cmp_eq_u32 s[38:39], 1, v6
    v_cmp_eq_u32 s[40:41], 2, v6
    v_cmp_eq_u32 s[42:43], 3, v6
    v_cmp_eq_u32 s[44:45], v5, v7
    """)
    for u in range(2):
        g = GR + 4 * u
        s = GR + 8 + 4 * u
        k(f"""
        v_cndmask_b32 v{g}, v{g}, v{g+1}, s[38:39]
        v_cndmask_b32 v{g}, v{g}, v{g+2}, s[40:41]
        v_cndmask_b32 v{g}, v{g}, v{g+3}, s[42:43]
        v_mul_f32 v{s}, {fbits(-1.0 / 512)}, v{s}
        v_mov_b32 v{s+1}, {fbits(1e-5)}
        v_mul_f32 v{g}, {fbits(1.0 / 512)}, v{g}
        v_fma_f32 v{g}, -v{s}, v{s}, v{g}
        v_max_f32 v{g}, 0, v{g}
        v_add_f32 v{s+1}, v{s+1}, v{g}
        v_rsq_f32 v{s+1}, v{s+1}
        """)
    k("s_mov_b64 exec, s[44:45]")
    for u in range(2):
        s = GR + 8 + 4 * u
        k(f"ds_write_b64 v9, v[{s}:{s+1}] offset:{128*u}")
    k("s_mov_b64 exec, -1")
    k(f"""
    s_mul_i32 s36, s30, 896
    s_add_u32 s36, s36, {G1_TAB}
    v_lshlrev_b32 v10, 4, v5
    v_add_u32 v10, s36, v10
    s_xor_b32 s36, s31, 2
    s_lshl_b32 s36, s36, 7
    s_add_u32 s36, s36, {G1_ST}
    v_add_u32 v11, s36, v8
    s_lshl_b32 s36, s16, 1
    s_add_u32 s36, s36, s29
    s_mul_i32 s36, s36, 224
    s_mul_i32 s37, s17, 14
    s_add_u32 s36, s36, s37
    s_mul_i32 s37, s30, 7
    s_add_u32 s36, s36, s37
    s_lshl_b32 s36, s36, 10
    s_add_u32 s36, s36, {WS_HH}
    s_lshl_b32 s37, s30, 9
    v_xor_b32 v12, s37, v3
    v_add_u32 v12, s36, v12
    v_add_u32 v13, 4096, v12
    """)
    T = FR
    for i in range(7):
        k(f"ds_read_b128 v[{T+8*i}:{T+8*i+3}], v10 offset:{128*i}")
        k(f"ds_read_b128 v[{T+8*i+4}:{T+8*i+7}], v10 offset:{128*i + 64}")
    k("s_waitcnt lgkmcnt(0)")
    k("s_barrier")
    S = FR + 56
    k(f"ds_read_b64 v[{S}:{S+1}], v9")
    k(f"ds_read_b64 v[{S+2}:{S+3}], v9 offset:128")
    k(f"ds_read_b64 v[{S+4}:{S+5}], v11")
    k(f"ds_read_b64 v[{S+6}:{S+7}], v11 offset:128")
    k("s_waitcnt lgkmcnt(0)")
    H = FR + 64
    for i in range(7):
        h = H + 4 * (i & 1)
        for u in range(4):
            a = ACC + 16 * i + 4 * u
            for p in range(2):
                k(f"v_pk_fma_f32 v[{a+2*p}:{a+2*p+1}], v[{T+8*i+2*p}:{T+8*i+2*p+1}], v[{S+2*u}:{S+2*u+1}], v[{a+2*p}:{a+2*p+1}] op_sel:[0,0,0] op_sel_hi:[1,0,1]")
        for u in range(4):
            a = ACC + 16 * i + 4 * u
            for p in range(2):
                k(f"v_pk_fma_f32 v[{a+2*p}:{a+2*p+1}], v[{a+2*p}:{a+2*p+1}], v[{S+2*u}:{S+2*u+1}], v[{T+8*i+4+2*p}:{T+8*i+5+2*p}] op_sel:[0,1,0] op_sel_hi:[1,1,1]")
        for u in range(4):
            a = ACC + 16 * i + 4 * u
            k(f"v_pk_mul_f32 v[{a}:{a+1}], v[{a}:{a+1}], v[{a+2}:{a+3}]")
        for u in range(4):
            a = ACC + 16 * i + 4 * u
            k(f"v_cvt_pk_bf16_f32 v{h+u}, v{a}, v{a+1}")
        k(f"v_permlane32_swap_b32 v{h}, v{h+2}")
        k(f"v_permlane32_swap_b32 v{h+1}, v{h+3}")
        k(f"v_permlane16_swap_b32 v{h}, v{h+1}")
        k(f"v_permlane16_swap_b32 v{h+2}, v{h+3}")
        k(f"global_store_dwordx4 v{12 + (i >> 2)}, v[{h}:{h+3}], s[4:5] offset:{1024 * (i & 3)}")
    stamp_out(k, 2, "s[4:5]", 4, 4)
    k("L_g1_end:")
    k("s_endpgm")
    return k


G2_RED = 0
G2_X = 65536
G2_LDS = G2_X + 8192
G2_DEPTH = 7


def gen_g2():
    k = Kernel("g2_kernel")
    ACC = 16
    stamp(k, 0)
    k(f"""
    s_cmp_ge_u32 s2, 256
    s_cbranch_scc1 L_g2_end
    s_load_dwordx2 s[4:5], s[0:1], {KA_WS}
    s_load_dwordx2 s[6:7], s[0:1], {KA_OUT}
    v_and_b32 v1, 63, v0
    v_lshrrev_b32 v2, 6, v0
    v_readfirstlane_b32 s22, v2
    s_and_b32 s16, s2, 7
    s_lshl_b32 s16, s16, 2
    s_bfe_u32 s17, s2, 0x20003
    s_add_u32 s16, s16, s17
    s_lshr_b32 s17, s2, 5
    s_mul_i32 s18, s16, {224 * 1024}
    s_add_u32 s18, s18, {WS_HH}
    s_mul_i32 s19, s17, {224 * 1024}
    s_add_u32 s19, s19, {WS_W2P}
    v_and_b32 v3, 15, v1
    v_lshrrev_b32 v4, 4, v1
    v_lshlrev_b32 v5, 4, v3
    v_lshl_add_u32 v5, v4, 10, v5
    v_mul_u32_u24 v6, {56 * 1024}, v2
    v_add_u32 v5, v5, v6
    """)
    for u in range(4):
        k(f"v_xor_b32 v6, {u}, v2")
        k(f"v_lshl_add_u32 v{8+u}, v6, 8, v5")
    k(f"""
    v_lshrrev_b32 v6, 3, v1
    v_lshl_add_u32 v6, v2, 4, v6
    v_lshlrev_b32 v6, 8, v6
    v_lshrrev_b32 v7, 5, v1
    s_and_b32 s20, s16, 1
    v_xor_b32 v7, s20, v7
    v_lshl_add_u32 v6, v7, 7, v6
    v_and_b32 v7, 7, v1
    v_lshl_add_u32 v6, v7, 4, v6
    s_lshr_b32 s20, s16, 1
    s_lshl_b32 s20, s20, 17
    s_lshl_b32 s21, s17, 14
    s_add_u32 s20, s20, s21
    s_add_u32 s20, s20, {WS_X1T}
    v_add_u32 v6, s20, v6
    v_add_u32 v7, 2048, v6
    s_lshl_b32 s23, s22, 11
    s_add_u32 s23, s23, {G2_X}
    s_lshl_b32 s20, s17, 8
    s_add_u32 s20, s20, {WS_MODF + 5 * 2048}
    v_lshlrev_b32 v12, 5, v4
    v_add_u32 v12, s20, v12
    s_mov_b32 s10, {224 * 1024}
    s_mov_b32 s11, 0x20000
    s_mov_b32 s14, {224 * 1024}
    s_mov_b32 s15, 0x20000
    s_mov_b32 s26, 0
    s_waitcnt lgkmcnt(0)
    s_add_u32 s8, s4, s18
    s_addc_u32 s9, s5, 0
    s_add_u32 s12, s4, s19
    s_addc_u32 s13, s5, 0
    """)

    def loads(ks):
        b = 32 * (ks % G2_DEPTH)
        out = []
        for i in range(4):
            out.append(f"buffer_load_dwordx4 a[{b+4*i}:{b+4*i+3}], v5, s[12:15], s26 offen offset:{256*i}")
            out.append(f"buffer_load_dwordx4 a[{b+16+4*i}:{b+19+4*i}], v{8+i}, s[8:11], s26 offen")
        out.append("s_add_u32 s26, s26, 4096")
        return out

    def mf(ks):
        b = 32 * (ks % G2_DEPTH)
        out = []
        for u in range(4):
            for dt in range(4):
                a = ACC + 16 * u + 4 * dt
                c = "0" if ks == 0 else f"v[{a}:{a+3}]"
                out.append(f"v_mfma_f32_16x16x32_bf16 v[{a}:{a+3}], a[{b+4*dt}:{b+4*dt+3}], a[{b+16+4*u}:{b+19+4*u}], {c}")
        return out

    for ks in range(G2_DEPTH):
        for x in loads(ks):
            k(x)
    extra = ["s_mov_b32 m0, s23", "global_load_lds_dwordx4 v6, s[4:5]", "s_add_u32 m0, m0, 1024",
             "global_load_lds_dwordx4 v7, s[4:5]"]
    extra += [f"global_load_dwordx4 v[{80+4*i}:{83+4*i}], v12, s[4:5] offset:{128*(i>>1) + 16*(i&1)}" for i in range(4)]
    issued = 8 * G2_DEPTH
    for ks in range(14):
        k(f"s_waitcnt vmcnt({issued - 8 * (ks + 1)})")
        if ks == 0:
            stamp(k, 1)
        fill = []
        if ks >= 1 and ks - 1 + G2_DEPTH < 14:
            fill = loads(ks - 1 + G2_DEPTH)
            issued += 8
        elif ks - 1 + G2_DEPTH == 14:
            fill = extra
            issued += 6
        for x in interleave(mf(ks), fill):
            k(x)
    stamp(k, 2)
    k(f"""
    v_lshlrev_b32 v13, 4, v1
    s_lshl_b32 s20, s22, 14
    s_lshl_b32 s21, s22, 12
    """)
    for u in range(1, 4):
        k(f"s_xor_b32 s24, s22, {u}")
        k(f"s_lshl_b32 s25, s24, 12")
        k(f"s_add_u32 s25, s25, s20")
        k(f"v_add_u32 v{8+u}, s25, v13")
        k(f"s_lshl_b32 s25, s24, 14")
        k(f"s_add_u32 s25, s25, s21")
        k(f"v_add_u32 v{4+u}, s25, v13")
    for u in range(1, 4):
        for dt in range(4):
            a = ACC + 16 * u + 4 * dt
            k(f"ds_write_b128 v{8+u}, v[{a}:{a+3}] offset:{G2_RED + 1024*dt}")
    k(f"""
    v_bfe_u32 v13, v1, 2, 2
    v_xor_b32 v14, s22, v13
    v_lshlrev_b32 v14, 5, v14
    v_lshl_add_u32 v13, v4, 3, v13
    v_lshl_add_u32 v14, v13, 7, v14
    v_and_b32 v13, 3, v1
    v_lshl_add_u32 v14, v13, 3, v14
    v_add_u32 v14, {G2_X}, v14
    s_lshl_b32 s20, s16, 6
    s_lshl_b32 s21, s22, 4
    s_add_u32 s20, s20, s21
    s_lshl_b32 s20, s20, 10
    s_lshl_b32 s21, s17, 7
    s_add_u32 s20, s20, s21
    v_lshlrev_b32 v15, 10, v3
    v_lshl_add_u32 v15, v4, 4, v15
    v_add_u32 v15, s20, v15
    s_waitcnt vmcnt(0) lgkmcnt(0)
    s_barrier
    """)
    for dt in range(4):
        k(f"ds_read_b64_tr_b16 v[{96+2*dt}:{97+2*dt}], v14 offset:{4096*(dt>>1) + 512*(dt&1)}")
    for u in range(1, 4):
        for dt in range(4):
            a = ACC + 16 * u + 4 * dt
            k(f"ds_read_b128 v[{a}:{a+3}], v{4+u} offset:{G2_RED + 1024*dt}")
        if u == 2:
            k("s_waitcnt lgkmcnt(8)")
            unpack8(k, 104, 96)
            unpack8(k, 112, 100)
    for u in range(1, 4):
        k(f"s_waitcnt lgkmcnt({4 * (3 - u)})")
        for p in range(8):
            k(f"v_pk_add_f32 v[{ACC+2*p}:{ACC+2*p+1}], v[{ACC+2*p}:{ACC+2*p+1}], v[{ACC+16*u+2*p}:{ACC+16*u+2*p+1}]")
    for hi in range(2):
        for p in range(4 * hi, 4 * hi + 4):
            k(f"v_pk_fma_f32 v[{ACC+2*p}:{ACC+2*p+1}], v[{ACC+2*p}:{ACC+2*p+1}], v[{80+2*p}:{81+2*p}], v[{104+2*p}:{105+2*p}]")
        for p in range(4 * hi, 4 * hi + 4):
            k(f"v_cvt_pk_bf16_f32 v{120+p}, v{ACC+2*p}, v{ACC+2*p+1}")
        k(f"global_store_dwordx4 v15, v[{120+4*hi}:{123+4*hi}], s[6:7] offset:{64*hi}")
    stamp_out(k, 3, "s[4:5]", 4, 4)
    k("L_g2_end:")
    k("s_endpgm")
    return k


def build(stampflag=False):
    Opt.stamp = stampflag
    ref = open(f"cdna_kernels/{NAME}.s.ref").read().split("\n")
    head = [ln for ln in ref[:ref.index(next(l for l in ref if l.startswith("; Override")))]]
    ks = [(gen_f1(), 256, 512, F1_LDS), (gen_f2(), 480, 256, F2_LDS), (gen_g1(), 256, 256, G1_LDS),
          (gen_g2(), 256, 256, G2_LDS)]
    out = "\n".join(head) + "\n"
    for k, g, b, lds in ks:
        out += f"; @launch kernel={k.name} grid=({g},1,1) block=({b},1,1) lds={lds}\n"
    out += '.amdgcn_target "amdgcn-amd-amdhsa--gfx950"\n.text\n'
    kds = ""
    for k, g, b, lds in ks:
        t, kd = k.text()
        out += t
        kds += ".p2align 6\n" + kd
        print(f"{k.name}: vgpr {k.maxv + 1} agpr {k.maxa + 1} sgpr {k.maxs + 1} nops {k.nops} lds {lds}", file=sys.stderr)
    out += "L_code_end:\n"
    out += '.section .rodata,"a"\n' + kds
    return out


if __name__ == "__main__":
    st = "--stamp" in sys.argv
    dst = [a for a in sys.argv[1:] if not a.startswith("--")]
    path = dst[0] if dst else f"cdna_kernels/{NAME}.s"
    open(path, "w").write(build(st))
```

```python
import re

TRANS = ("v_exp_f32", "v_log_f32", "v_rcp_f32", "v_rsq_f32", "v_sqrt_f32", "v_sin_f32", "v_cos_f32",
         "v_rcp_iflag_f32")

_reg_re = re.compile(r"(?<![\w.])([vas])(\d+)(?![\w\[])|(?<![\w.])([vas])\[(\d+):(\d+)\]")


def regs_of(op):
    out = set()
    for m in _reg_re.finditer(op):
        if m.group(1):
            out.add((m.group(1), int(m.group(2))))
        else:
            for r in range(int(m.group(4)), int(m.group(5)) + 1):
                out.add((m.group(3), r))
    if re.search(r"\bvcc\b", op):
        out.add(("s", "vcc"))
    if re.search(r"\bexec\b", op):
        out.add(("s", "exec"))
    if re.search(r"\bm0\b", op):
        out.add(("s", "m0"))
    return out


def split_ops(s):
    ops, depth, cur = [], 0, ""
    for ch in s:
        if ch in "[(":
            depth += 1
        if ch in "])":
            depth -= 1
        if ch == "," and depth == 0:
            ops.append(cur.strip())
            cur = ""
        else:
            cur += ch
    if cur.strip():
        ops.append(cur.strip())
    return ops


class Ins:
    def __init__(self, text):
        self.text = text
        t = text.split(";")[0].strip()
        self.label = t[:-1] if t.endswith(":") else None
        self.directive = t.startswith(".") and not self.label
        self.empty = not t
        self.mn = "" if (self.label or self.directive or self.empty) else t.split()[0]
        rest = t[len(self.mn):].strip() if self.mn else ""
        self.ops = split_ops(rest)
        mn = self.mn
        self.mfma = mn.startswith("v_mfma")
        self.valu = mn.startswith("v_") and not self.mfma
        self.ds = mn.startswith("ds_")
        self.vmem = mn.startswith(("buffer_", "global_", "flat_"))
        self.salu = mn.startswith("s_")
        self.trans = mn.replace("_e32", "").replace("_e64", "") in TRANS
        self.dpp = self.valu and bool(re.search(r"\b(row_|quad_perm|wave_|row_bcast)", rest) or mn.endswith("_dpp"))
        self.sdwa = self.valu and ("sdwa" in mn or "op_sel" in rest and not mn.startswith("v_pk_"))
        self.permlane = mn.startswith("v_permlane")
        self.lanerd = mn.startswith(("v_readlane", "v_readfirstlane"))
        self.lds_dma = self.vmem and (re.search(r"\blds\b", rest) is not None or "load_lds" in mn)
        self.passes = 0
        self.w, self.r = set(), set()
        self.srcc = set()
        self.stdata = set()
        o = self.ops
        if self.mfma:
            self.passes = 8 if "32x32" in mn else 4
            self.w = regs_of(o[0])
            self.ab = regs_of(o[1]) | regs_of(o[2])
            self.srcc = regs_of(o[3])
            self.r = self.ab | self.srcc
        elif self.valu:
            if mn.startswith("v_nop"):
                pass
            elif mn.startswith("v_cmp"):
                self.w = regs_of(o[0])
                if mn.startswith("v_cmpx"):
                    self.w |= {("s", "exec")}
                for x in o[1:]:
                    self.r |= regs_of(x)
            elif self.permlane or mn.startswith("v_swap"):
                self.w = regs_of(o[0]) | regs_of(o[1])
                self.r = set(self.w)
            else:
                self.w = regs_of(o[0])
                k = 1
                if re.match(r"v_(add|sub|subrev|addc|subb)_co", mn) or mn.startswith(("v_mad_u64", "v_div_scale")):
                    self.w |= regs_of(o[1])
                    k = 2
                for x in o[k:]:
                    self.r |= regs_of(x)
                if mn.startswith(("v_fmac", "v_dot2c", "v_writelane", "v_pk_fmac")) or self.dpp:
                    self.r |= regs_of(o[0])
        elif self.ds:
            if mn.startswith(("ds_read", "ds_bpermute", "ds_permute", "ds_swizzle")) or "_rtn" in mn:
                self.w = regs_of(o[0])
                for x in o[1:]:
                    self.r |= regs_of(x)
            else:
                for x in o:
                    self.r |= regs_of(x)
        elif self.vmem:
            is_load = "_load" in mn
            if is_load and not self.lds_dma:
                self.w = regs_of(o[0])
                for x in o[1:]:
                    self.r |= regs_of(x)
            else:
                for x in o:
                    self.r |= regs_of(x)
                if "atomic" in mn and re.search(r"\bsc0\b", rest):
                    self.w = regs_of(o[0])
            if "_store" in mn and ("x3" in mn or "x4" in mn):
                self.stdata = regs_of(o[0] if mn.startswith("buffer_") else o[1])
            if self.lds_dma:
                self.r.add(("s", "m0"))
        elif self.salu:
            if mn.startswith(("s_cmp", "s_waitcnt", "s_nop", "s_barrier", "s_branch", "s_cbranch", "s_endpgm",
                              "s_setprio", "s_sleep", "s_bitcmp")):
                for x in o:
                    self.r |= regs_of(x)
            elif o:
                self.w = regs_of(o[0])
                for x in o[1:]:
                    self.r |= regs_of(x)
                if "saveexec" in mn:
                    self.w.add(("s", "exec"))
        if mn.startswith("v_pk_") and mn != "v_pk_mov_b32":
            m = re.search(r"op_sel:\[([01,]+)\]", rest)
            assert not (m and "1" in m.group(1)[1:]), "unsafe packed op_sel: " + text
        self.branch = o[0] if mn.startswith(("s_branch", "s_cbranch")) else None

    @property
    def real(self):
        return bool(self.mn)

    def states(self):
        if self.mn == "s_nop":
            return int(self.ops[0], 0) + 1
        return 1


def _vec(rs):
    return {r for r in rs if r[0] in "va"}


def _sc(rs):
    return {r for r in rs if r[0] == "s"}


def need(p, c):
    n = 0
    if p.valu:
        pv = _vec(p.w)
        ps = _sc(p.w)
        if c.mfma and pv & c.r:
            n = max(n, 2)
        if (c.dpp or c.permlane) and pv & c.r:
            n = max(n, 2)
        if c.lanerd and pv & c.r:
            n = max(n, 1)
        if p.trans and c.valu and not c.trans and pv & c.r:
            n = max(n, 1)
        if p.trans and (c.mfma or c.ds or c.vmem) and pv & c.r:
            n = max(n, 2)
        if p.sdwa and c.valu and pv & (c.r | c.w):
            n = max(n, 1)
        if ps:
            if c.vmem and ps & c.r:
                n = max(n, 5)
            if c.valu and ps & c.r:
                n = max(n, 4 if c.mn.startswith(("v_readlane", "v_writelane", "v_div_fmas")) else 2)
            if c.salu and ps & c.r:
                n = max(n, 1)
            if ("s", "exec") in ps:
                if c.dpp:
                    n = max(n, 5)
                if c.mfma or c.permlane or c.lanerd:
                    n = max(n, 4)
    if p.mn.startswith("v_dot") and (c.valu or c.mfma or c.ds or c.vmem) and _vec(p.w) & (c.r | c.w):
        if not (c.mn == p.mn and not (_vec(p.w) & (regs_of(c.ops[1]) | regs_of(c.ops[2])))):
            n = max(n, 3)
    if p.mn.startswith("v_pk_") and c.mfma:
        n = max(n, 2)
    if p.salu and ("s", "m0") in p.w and c.lds_dma:
        n = max(n, 1)
    if p.stdata and (c.valu or c.mfma) and p.stdata & c.w:
        n = max(n, 2)
    if p.stdata and (c.ds or c.vmem) and p.stdata & c.w:
        n = max(n, 1)
    if p.mfma:
        big = {4: 8, 8: 12}[p.passes]
        if c.mfma:
            if p.w & c.ab:
                n = max(n, big)
            if p.w & c.srcc and not (p.w == c.srcc and p.passes == c.passes):
                n = max(n, {4: 6, 8: 10}[p.passes])
            if p.w & c.w and not (p.w & c.srcc):
                n = max(n, {4: 6, 8: 10}[p.passes])
        elif (c.valu or c.ds or c.vmem) and p.w & (c.r | c.w):
            n = max(n, big)
        if c.valu and p.srcc & c.w:
            n = max(n, {4: 3, 8: 7}[p.passes])
    return n


MAXD = 12


class Kernel:
    def __init__(self, name):
        self.name = name
        self.lines = []

    def __call__(self, text):
        for ln in text.split("\n"):
            if ln.strip():
                self.lines.append(ln.strip())

    def _short(self, prev, c):
        miss, d = 0, 0
        for p in reversed(prev):
            if d >= MAXD:
                break
            miss = max(miss, need(p, c) - d)
            d += p.states()
        return miss

    def finalize(self):
        ins = [Ins(t) for t in self.lines]
        out = []
        hist = []
        nops = 0
        for c in ins:
            if c.real:
                m = self._short(hist, c)
                if m > 0:
                    n = Ins(f"s_nop {m - 1}")
                    out.append(n)
                    hist.append(n)
                    nops += 1
                hist.append(c)
                if c.mn in ("s_branch", "s_endpgm"):
                    hist = []
            out.append(c)
        labels = {c.label: i for i, c in enumerate(out) if c.label}
        for i, c in enumerate(out):
            if c.branch and c.branch in labels:
                prev = [p for p in out[max(0, i - 40):i + 1] if p.real]
                j = labels[c.branch]
                d = 0
                for t in out[j:]:
                    if not t.real:
                        continue
                    m = self._short(prev, t)
                    if m > 0:
                        raise RuntimeError(f"{self.name}: hazard across branch to {c.branch}: '{t.text}' short {m}")
                    prev.append(t)
                    d += t.states()
                    if d >= MAXD or t.mn in ("s_branch", "s_endpgm"):
                        break
        self.nops = nops
        self.maxv = max([r[1] for c in out for r in (c.r | c.w) if r[0] == "v"] + [0])
        self.maxa = max([r[1] for c in out for r in (c.r | c.w) if r[0] == "a"] + [-1])
        self.maxs = max([r[1] for c in out for r in (c.r | c.w) if r[0] == "s" and isinstance(r[1], int)] + [0])
        return "\n".join((c.text if c.label else "    " + c.text) for c in out) + "\n"

    def text(self):
        body = self.finalize()
        accum = (self.maxv + 1 + 3) // 4 * 4
        nfv = accum + self.maxa + 1 if self.maxa >= 0 else self.maxv + 1
        n = self.name
        head = f".globl {n}\n.p2align 8\n.type {n},@function\n{n}:\n"
        kd = f""".amdhsa_kernel {n}
  .amdhsa_next_free_vgpr {nfv}
  .amdhsa_next_free_sgpr {self.maxs + 1}
  .amdhsa_accum_offset {accum}
  .amdhsa_group_segment_fixed_size 0
  .amdhsa_kernarg_size 144
  .amdhsa_user_sgpr_count 2
  .amdhsa_user_sgpr_kernarg_segment_ptr 1
  .amdhsa_system_sgpr_workgroup_id_x 1
.end_amdhsa_kernel
"""
        self.nfv = nfv
        return head + body, kd


def interleave(main, fill, start=0, per=None):
    out = []
    n = len(main) - start
    rate = per if per is not None else (len(fill) / n if n else 0)
    k = 0
    for i, m in enumerate(main):
        out.append(m)
        if i >= start:
            while k < len(fill) and k < (i - start + 1) * rate - 1e-9:
                out.append(fill[k])
                k += 1
    out.extend(fill[k:])
    return out
```

```python
import sys, os, math, struct
sys.path.insert(0, os.path.dirname(os.path.abspath(__file__)))
from asmlib import Kernel, interleave

NAME = "adaLN_cond__ssm_conv_s4__glu_gated_bilinear__prompt"

KA_U, KA_ARE, KA_AIM, KA_BRE, KA_BIM, KA_CRE, KA_CIM, KA_LDT, KA_DSK = 0, 8, 16, 24, 32, 40, 48, 56, 64
KA_WG, KA_WU, KA_WD, KA_C, KA_WMOD, KA_OUT, KA_DBG, KA_WS = 80, 88, 96, 104, 112, 120, 128, 136

WS_XT = 0x000000
WS_X1T = 0x200000
WS_W1P = 0x400000
WS_ST1 = 0x780000
WS_MODB = 0x784000
WS_MODF = 0x786000
WS_W1A = 0x9C0000
WS_STP = 0x7C0000
WS_CNT = 0x7E0000
WS_W2P = 0x800000
WS_HH = 0xA00000
WS_STAMP = 0x1200000

LOG2E = 1.4426950408889634


def fbits(x):
    return "0x%08x" % struct.unpack("<I", struct.pack("<f", x))[0]


class Opt:
    stamp = False
    gslot = 2
    g_steps = 0
    g_fine = 6
    g_la = 5
    g_bp = 2
    g_bp0 = 8
    g_nbp0 = 3
    g_pbar = 1
    g_pre = 17
    g_pre2 = 2
    g_rate = 7
    g_trate = 6
    g_gat = 7
    g_w2epi = 1
    g_w2drain = 16
    g_ahead = 3


def stamp(k, n, step=False):
    if Opt.g_steps and k.name == "g_kernel" and n and not step:
        return
    if Opt.stamp:
        k(f"s_memrealtime s[{64 + 2 * n}:{65 + 2 * n}]")


def stamp_out(k, slot, ws, nst, vt, last=None):
    if not Opt.stamp:
        return
    k("s_waitcnt vmcnt(0)")
    stamp(k, nst - 1 if last is None else last)
    k("s_waitcnt lgkmcnt(0)")
    k(f"s_mov_b64 exec, -1")
    k(f"s_lshl_b32 s62, s2, 6")
    k(f"s_add_u32 s62, s62, {WS_STAMP + slot * 0x10000}")
    k(f"v_cmp_eq_u32 vcc, 0, v0")
    k(f"s_and_saveexec_b64 s[60:61], vcc")
    k(f"s_cbranch_execz L_{k.name}_st{slot}_{vt}")
    k(f"v_mov_b32 v{vt}, s62")
    for i in range(nst):
        k(f"v_mov_b32 v{vt + 1}, s{64 + 2 * i}")
        k(f"global_store_dword v{vt}, v{vt + 1}, {ws} offset:{4 * i}")
    k(f"L_{k.name}_st{slot}_{vt}:")


def wave_allreduce(k, v, t):
    for r in (8, 4, 2, 1):
        k(f"v_add_f32_dpp v{v}, v{v}, v{v} row_ror:{r} row_mask:0xf bank_mask:0xf")
    k(f"v_mov_b32 v{t}, v{v}")
    k(f"v_permlane16_swap_b32 v{v}, v{t}")
    k(f"v_add_f32 v{v}, v{v}, v{t}")
    k(f"v_mov_b32 v{t}, v{v}")
    k(f"v_permlane32_swap_b32 v{v}, v{t}")
    k(f"v_add_f32 v{v}, v{v}, v{t}")


def unpack8(k, dst, src):
    for i in range(4):
        k(f"v_lshlrev_b32 v{dst + 2 * i}, 16, v{src + i}")
        k(f"v_and_b32 v{dst + 2 * i + 1}, 0xffff0000, v{src + i}")


def code_prefetch(k, va, vd, end_label, nthreads):
    k("s_getpc_b64 s[58:59]")
    k(f"L_{k.name}_pc:")
    k(f"v_lshlrev_b32 v{va}, 7, v0")
    k(f"v_min_u32 v{va}, {end_label}-L_{k.name}_pc-4, v{va}")
    k(f"global_load_dword v{vd}, v{va}, s[58:59]")


F1_XROW = 1088
F1_WT = 9216
F1_SIL = F1_WT + 16384
F1_PART = F1_SIL + 1024
F1_STAT = F1_PART + 512
F1_LDS = F1_STAT + 64


def gen_f1():
    k = Kernel("f1_kernel")
    stamp(k, 0)
    k(f"""
    s_cmp_ge_u32 s2, 256
    s_cbranch_scc1 L_f1_end
    s_load_dwordx2 s[4:5], s[0:1], {KA_U}
    s_load_dwordx4 s[8:11], s[0:1], {KA_C}
    s_load_dwordx2 s[12:13], s[0:1], {KA_WS}
    """)
    code_prefetch(k, 40, 41, "L_code_end", 512)
    k(f"""
    v_and_b32 v1, 63, v0
    v_lshrrev_b32 v2, 6, v0
    v_readfirstlane_b32 s14, v2
    s_lshl_b32 s15, s2, 13
    v_lshlrev_b32 v3, 4, v0
    v_add_u32 v3, s15, v3
    s_and_b32 s16, s2, 7
    s_mul_i32 s16, s16, 24
    s_lshr_b32 s17, s2, 3
    s_add_u32 s16, s16, s17
    v_lshrrev_b32 v16, 1, v1
    v_lshl_add_u32 v16, v2, 6, v16
    v_mul_u32_u24 v16, 6144, v16
    v_and_b32 v17, 1, v1
    v_lshl_add_u32 v16, v17, 4, v16
    s_lshl_b32 s17, s16, 5
    v_add_u32 v16, s17, v16
    v_add_u32 v17, {32 * 6144}, v16
    v_lshlrev_b32 v18, 1, v0
    s_lshl_b32 s18, s14, 11
    s_add_u32 s18, s18, {F1_WT}
    s_add_u32 s19, s18, 1024
    s_waitcnt lgkmcnt(0)
    global_load_dwordx4 v[4:7], v3, s[4:5]
    global_load_ushort v19, v18, s[8:9]
    s_cmp_ge_u32 s2, 192
    s_cbranch_scc1 L_f1_nomod_a
    s_mov_b32 m0, s18
    global_load_lds_dwordx4 v16, s[10:11]
    s_mov_b32 m0, s19
    global_load_lds_dwordx4 v17, s[10:11]
    s_waitcnt vmcnt(2)
    s_branch L_f1_a
    L_f1_nomod_a:
    s_waitcnt vmcnt(0)
    L_f1_a:
    """)
    stamp(k, 1)
    k(f"""
    v_mul_u32_u24 v20, {F1_XROW}, v2
    v_lshl_add_u32 v20, v1, 4, v20
    ds_write_b128 v20, v[4:7]
    v_lshlrev_b32 v19, 16, v19
    v_mul_f32 v21, {fbits(-LOG2E)}, v19
    v_exp_f32 v21, v21
    """)
    unpack8(k, 8, 4)
    k(f"""
    v_add_f32 v21, 1.0, v21
    v_rcp_f32 v21, v21
    v_add_f32 v22, v8, v9
    v_add_f32 v23, v10, v11
    v_mul_f32 v21, v19, v21
    v_cvt_pk_bf16_f32 v21, v21, v21
    ds_write_b16 v18, v21 offset:{F1_SIL}
    v_add_f32 v24, v12, v13
    v_add_f32 v25, v14, v15
    v_add_f32 v22, v22, v23
    v_add_f32 v24, v24, v25
    v_add_f32 v22, v22, v24
    """)
    wave_allreduce(k, 22, 23)
    k(f"v_mul_f32 v22, {fbits(1.0 / 512)}, v22")
    for i in range(8):
        k(f"v_sub_f32 v{8 + i}, v{8 + i}, v22")
    k("v_mul_f32 v24, v8, v8")
    k("v_mul_f32 v25, v9, v9")
    for i in range(2, 8):
        k(f"v_fmac_f32 v{24 + (i & 1)}, v{8 + i}, v{8 + i}")
    k("v_add_f32 v24, v24, v25")
    wave_allreduce(k, 24, 23)
    k(f"""
    v_mov_b32 v25, {fbits(1e-5)}
    v_fmac_f32 v25, {fbits(1.0 / 512)}, v24
    v_rsq_f32 v25, v25
    v_lshrrev_b32 v27, 1, v2
    v_lshlrev_b32 v27, 4, v27
    v_and_b32 v28, 1, v2
    v_lshl_add_u32 v27, v28, 2, v27
    v_mul_f32 v26, -v22, v25
    v_add_u32 v27, {F1_STAT}, v27
    ds_write2_b32 v27, v25, v26 offset0:0 offset1:2
    s_cmp_ge_u32 s2, 192
    s_cbranch_scc1 L_f1_nomod_b
    v_lshlrev_b32 v28, 3, v1
    v_add_u32 v28, s18, v28
    v_lshrrev_b32 v29, 4, v1
    v_lshlrev_b32 v29, 3, v29
    v_lshl_add_u32 v29, v2, 7, v29
    s_waitcnt vmcnt(0) lgkmcnt(0)
    ds_read_b64_tr_b16 v[8:9], v28
    ds_read_b64_tr_b16 v[10:11], v28 offset:512
    ds_read_b64 v[32:33], v29 offset:{F1_SIL}
    ds_read_b64 v[34:35], v29 offset:{F1_SIL + 32}
    ds_read_b64_tr_b16 v[12:13], v28 offset:1024
    ds_read_b64_tr_b16 v[14:15], v28 offset:1536
    ds_read_b64 v[36:37], v29 offset:{F1_SIL + 64}
    ds_read_b64 v[38:39], v29 offset:{F1_SIL + 96}
    v_lshlrev_b32 v28, 2, v1
    v_lshl_add_u32 v28, v2, 6, v28
    s_waitcnt lgkmcnt(4)
    v_mfma_f32_16x16x32_bf16 v[24:27], v[32:35], v[8:11], 0
    s_waitcnt lgkmcnt(0)
    v_mfma_f32_16x16x32_bf16 v[24:27], v[36:39], v[12:15], v[24:27]
    s_mov_b64 exec, 0xffff
    ds_write_b32 v28, v24 offset:{F1_PART}
    s_mov_b64 exec, -1
    L_f1_nomod_b:
    """)
    k(f"""
    v_bfe_u32 v28, v1, 2, 2
    v_mul_u32_u24 v28, {F1_XROW}, v28
    v_lshrrev_b32 v29, 4, v0
    v_lshl_add_u32 v28, v29, 5, v28
    v_and_b32 v29, 3, v1
    v_lshl_add_u32 v28, v29, 3, v28
    s_waitcnt lgkmcnt(0)
    s_barrier
    ds_read_b64_tr_b16 v[4:5], v28
    ds_read_b64_tr_b16 v[6:7], v28 offset:{4 * F1_XROW}
    s_cmp_eq_u32 s14, 1
    s_cbranch_scc1 L_f1_stat
    s_cmp_lg_u32 s14, 0
    s_cbranch_scc1 L_f1_fin
    s_cmp_ge_u32 s2, 192
    s_cbranch_scc1 L_f1_fin
    v_and_b32 v28, 15, v1
    v_lshlrev_b32 v29, 2, v28
    """)
    for i in range(8):
        k(f"ds_read_b32 v{8 + i}, v29 offset:{F1_PART + 64 * i}")
    k(f"""
    s_lshr_b32 s17, s16, 5
    s_cmp_eq_u32 s17, 1
    s_cselect_b32 s20, 1.0, 0
    s_cmp_eq_u32 s17, 4
    s_cselect_b32 s20, 1.0, s20
    s_lshl_b32 s17, s16, 4
    v_add_u32 v28, s17, v28
    v_lshlrev_b32 v29, 2, v28
    v_add_u32 v29, {WS_MODF}, v29
    v_lshlrev_b32 v28, 1, v28
    v_add_u32 v28, {WS_MODB}, v28
    s_waitcnt lgkmcnt(0)
    v_add_f32 v8, v8, v9
    v_add_f32 v10, v10, v11
    v_add_f32 v12, v12, v13
    v_add_f32 v14, v14, v15
    v_add_f32 v8, v8, v10
    v_add_f32 v12, v12, v14
    v_add_f32 v8, v8, v12
    v_cvt_pk_bf16_f32 v8, v8, v8
    v_lshlrev_b32 v8, 16, v8
    v_add_f32 v8, s20, v8
    v_cvt_pk_bf16_f32 v8, v8, v8
    v_lshlrev_b32 v9, 16, v8
    s_mov_b64 exec, 0xffff
    global_store_short v28, v8, s[12:13]
    global_store_dword v29, v9, s[12:13]
    s_mov_b64 exec, -1
    s_branch L_f1_fin
    L_f1_stat:
    v_and_b32 v28, 3, v1
    v_lshlrev_b32 v29, 4, v28
    ds_read_b128 v[8:11], v29 offset:{F1_STAT}
    v_lshlrev_b32 v28, 12, v28
    s_lshl_b32 s17, s2, 4
    s_add_u32 s17, s17, {WS_ST1}
    v_add_u32 v28, s17, v28
    s_waitcnt lgkmcnt(0)
    s_mov_b64 exec, 0xf
    global_store_dwordx4 v28, v[8:11], s[12:13]
    s_mov_b64 exec, -1
    L_f1_fin:
    s_waitcnt lgkmcnt(0)
    global_store_dwordx4 v3, v[4:7], s[12:13]
    """)
    stamp_out(k, 0, "s[12:13]", 3, 30)
    k("L_f1_end:")
    k("s_endpgm")
    return k


F2_HS = 0
F2_HSZ = 4608
F2_BASE = F2_HS + 2 * F2_HSZ
F2_KC = F2_BASE + 16384
F2_KCZ = 2816
F2_KR = F2_KC + 4 * F2_KCZ
F2_KRZ = 4160
F2_PRM = F2_KR + 4 * F2_KRZ
F2_LDS = F2_PRM + 4 * 3072
LAMBDA = [0, 1, 2, 3, 256, 258, 260, 262, 512, 516, 4, 5, 768, 772, 6, 7]


def ci_addr(k, dst, j, t):
    k(f"""
    v_max_i32 v{t}, 0, v{j}
    v_cvt_f32_u32 v{t}, v{t}
    v_cvt_pk_bf16_f32 v{t}, v{t}, v{t}
    v_lshrrev_b32 v{t}, 16, v{t}
    v_subrev_u32 v{t}, 0x4280, v{t}
    v_min_i32 v{dst}, 0x80, v{j}
    v_max_i32 v{dst}, v{dst}, v{t}
    v_ashrrev_i32 v{t}, 5, v{dst}
    v_add3_u32 v{dst}, v{dst}, v{t}, 2
    v_lshlrev_b32 v{dst}, 2, v{dst}
    """)


def cexp(k, dre, dim, al, be, lam, t):
    k(f"""
    v_mul_f32 v{t}, {fbits(lam)}, v{be}
    v_mul_f32 v{t + 1}, {fbits(lam)}, v{al}
    v_fract_f32 v{t}, v{t}
    v_exp_f32 v{t + 1}, v{t + 1}
    v_cos_f32 v{dre}, v{t}
    v_sin_f32 v{dim}, v{t}
    v_mul_f32 v{dre}, v{dre}, v{t + 1}
    v_mul_f32 v{dim}, v{dim}, v{t + 1}
    """)


def pk_cmul(d, a, b, conj_out=False):
    n1 = " neg_lo:[1,0]" if conj_out else ""
    n2 = " neg_lo:[1,0,0]" if conj_out else ""
    return [f"v_pk_mul_f32 v[{d}:{d+1}], v[{b}:{b+1}], v[{a}:{a+1}] op_sel:[1,0] op_sel_hi:[0,0]{n1}",
            f"v_pk_fma_f32 v[{d}:{d+1}], v[{a}:{a+1}], v[{b}:{b+1}], v[{d}:{d+1}] op_sel:[1,0,0] op_sel_hi:[1,1,1]{n2} neg_hi:[1,0,0]"]


def gen_f2_conv(k):
    k(f"""
    s_load_dwordx4 s[4:7], s[0:1], {KA_ARE}
    s_load_dwordx8 s[8:15], s[0:1], {KA_BRE}
    s_load_dwordx4 s[16:19], s[0:1], {KA_LDT}
    s_load_dwordx2 s[20:21], s[0:1], {KA_WS}
    v_and_b32 v1, 63, v0
    v_lshrrev_b32 v2, 6, v0
    v_readfirstlane_b32 s22, v2
    s_and_b32 s23, s2, 7
    s_lshl_b32 s23, s23, 5
    s_lshr_b32 s24, s2, 3
    s_add_u32 s23, s23, s24
    s_lshl_b32 s24, s23, 9
    v_lshlrev_b32 v3, 1, v0
    v_add_u32 v3, s24, v3
    s_lshl_b32 s24, s23, 5
    v_lshlrev_b32 v4, 13, v0
    v_add_u32 v4, s24, v4
    v_lshlrev_b32 v5, 4, v0
    v_add_u32 v6, {WS_ST1}, v5
    v_add_u32 v7, {WS_ST1 + 8192}, v5
    s_lshl_b32 s24, s23, 2
    s_lshl_b32 s25, s23, 3
    s_add_u32 s25, s25, {WS_MODF}
    s_add_u32 s26, s25, 2048
    s_add_u32 s27, s25, 4096
    s_waitcnt lgkmcnt(0)
    global_load_ushort v8, v3, s[4:5]
    global_load_ushort v9, v3, s[6:7]
    global_load_ushort v10, v3, s[8:9]
    global_load_ushort v11, v3, s[10:11]
    global_load_ushort v12, v3, s[12:13]
    global_load_ushort v13, v3, s[14:15]
    s_load_dword s28, s[16:17], s24
    s_load_dword s29, s[18:19], s24
    s_load_dwordx2 s[30:31], s[20:21], s25
    s_load_dwordx2 s[32:33], s[20:21], s26
    s_load_dwordx2 s[34:35], s[20:21], s27
    global_load_dwordx4 v[208:211], v4, s[20:21]
    global_load_dwordx4 v[212:215], v4, s[20:21] offset:16
    global_load_dwordx4 v[216:219], v6, s[20:21]
    global_load_dwordx4 v[220:223], v7, s[20:21] offset:-4096
    global_load_dwordx4 v[224:227], v7, s[20:21]
    v_add_u32 v7, 4096, v7
    global_load_dwordx4 v[228:231], v7, s[20:21]
    """)
    k(f"""
    v_mov_b32 v16, 0
    v_mov_b32 v17, 0
    v_mov_b32 v18, 0
    v_mov_b32 v19, 0
    s_lshl_b32 s36, s2, 9
    s_add_u32 s36, s36, {WS_STP}
    s_lshl_b32 s37, s2, 7
    s_add_u32 s37, s37, {WS_CNT - 512}
    v_mov_b32 v20, s36
    v_mov_b32 v21, s37
    v_cmp_gt_u32 vcc, 32, v0
    v_cndmask_b32 v20, v21, v20, vcc
    v_add_u32 v20, v20, v5
    v_cmp_gt_u32 vcc, 40, v0
    s_and_saveexec_b64 s[36:37], vcc
    s_cbranch_execz L_f2_noclr
    global_store_dwordx4 v20, v[16:19], s[20:21]
    L_f2_noclr:
    s_mov_b64 exec, -1
    v_mul_u32_u24 v20, {F2_KCZ}, v2
    ds_write_b32 v20, v16 offset:{F2_KC}
    v_min_u32 v20, 464, v5
    ds_write_b128 v20, v[16:19] offset:{F2_HS}
    ds_write_b128 v20, v[16:19] offset:{F2_HS + F2_HSZ}
    v_and_b32 v20, 1, v1
    v_lshlrev_b32 v20, 4, v20
    v_mov_b32 v21, {F2_KRZ}
    v_mad_u32_u24 v20, v2, v21, v20
    ds_write_b128 v20, v[16:19] offset:{F2_KR + 4096}
    """)
    k("v_lshlrev_b32 v20, 3, v0")
    for e in range(9):
        k(f"v_sub_u32 v21, {2047 - e}, v20")
        ci_addr(k, 232 + e, 21, 22)
        k(f"v_add_u32 v{232 + e}, {F2_KC}, v{232 + e}")
    lo = sum((LAMBDA[i] & 15) << (4 * i) for i in range(16))
    hi = sum((LAMBDA[i] >> 8) << (2 * i) for i in range(16))
    k(f"""
    v_and_b32 v14, 15, v1
    v_lshrrev_b32 v15, 4, v1
    s_mov_b32 s36, {lo & 0xffffffff}
    s_mov_b32 s37, {lo >> 32}
    s_mov_b32 s38, {hi}
    v_lshlrev_b32 v20, 2, v14
    v_lshrrev_b64 v[22:23], v20, s[36:37]
    v_and_b32 v22, 15, v22
    v_lshlrev_b32 v20, 1, v14
    v_bfe_u32 v21, s38, v20, 2
    v_lshl_add_u32 v21, v21, 8, v22
    v_cvt_f32_u32 v252, v21
    v_lshlrev_b32 v21, 3, v14
    v_cvt_f32_u32 v242, v21
    """)
    k(f"""
    s_lshr_b32 s39, s22, 1
    s_mul_i32 s40, s22, {F2_KCZ}
    s_add_u32 s40, s40, {F2_KC}
    v_lshl_add_u32 v24, v15, 8, v21
    """)
    ci_addr(k, 244, 24, 22)
    k("v_add_u32 v25, 0x80, v24")
    ci_addr(k, 245, 25, 22)
    k("v_add_u32 v25, 0x400, v24")
    ci_addr(k, 248, 25, 22)
    k(f"""
    v_lshlrev_b32 v24, 1, v15
    v_mov_b32 v25, 0x104
    v_max_u32 v24, 2, v24
    v_cmp_eq_u32 vcc, 1, v15
    v_cndmask_b32 v24, v24, v25, vcc
    v_add_u32 v24, v24, v21
    """)
    ci_addr(k, 246, 24, 22)
    k("v_add_u32 v25, 0x80, v24")
    ci_addr(k, 247, 25, 22)
    for r in range(244, 249):
        k(f"v_add_u32 v{r}, s40, v{r}")
    k(f"""
    s_mul_i32 s41, s22, 3072
    s_add_u32 s41, s41, {F2_PRM}
    v_mul_u32_u24 v249, 48, v1
    v_add_u32 v249, s41, v249
    v_mul_u32_u24 v250, 192, v15
    v_add_u32 v250, s41, v250
    v_cmp_eq_u32 vcc, 1, v14
    v_cndmask_b32 v251, 16, 32, vcc
    v_add_u32 v251, v250, v251
    s_waitcnt lgkmcnt(0)
    s_lshl_b32 s42, s39, 4
    s_lshr_b32 s28, s28, s42
    s_lshl_b32 s28, s28, 16
    v_mov_b32 v20, {fbits(LOG2E)}
    v_mul_f32 v20, s28, v20
    v_exp_f32 v20, v20
    v_cvt_pk_bf16_f32 v20, v20, v20
    v_lshlrev_b32 v20, 16, v20
    v_mul_f32 v21, {fbits(LOG2E)}, v20
    v_mul_f32 v22, {fbits(1.0 / (2 * math.pi))}, v20
    s_waitcnt vmcnt(6)
    """)
    stamp(k, 1)
    for r in range(8, 14):
        k(f"v_lshlrev_b32 v{r}, 16, v{r}")
    k(f"""
    v_mul_f32 v24, v8, v21
    v_mul_f32 v25, v9, v22
    v_mul_f32 v10, v10, v20
    v_mul_f32 v11, v11, v20
    v_rndne_f32 v23, v25
    v_mul_f32 v26, v12, v10
    v_mul_f32 v27, v12, v11
    v_sub_f32 v25, v25, v23
    v_fma_f32 v26, -v13, v11, v26
    v_fma_f32 v27, v13, v10, v27
    ds_write_b128 v249, v[24:27]
    """)
    cexp(k, 36, 37, 24, 25, 128.0, 40)
    cexp(k, 30, 31, 24, 25, 1024.0, 42)
    cexp(k, 34, 35, 24, 25, 2047.0, 44)
    k(f"""
    v_mul_f32 v28, v26, v36
    v_mul_f32 v29, v26, v37
    v_fma_f32 v28, -v27, v37, v28
    v_fma_f32 v29, v27, v36, v29
    v_mov_b32 v32, v28
    v_mov_b32 v33, v29
    ds_write_b128 v249, v[28:31] offset:16
    ds_write_b128 v249, v[32:35] offset:32
    s_waitcnt lgkmcnt(0)
    """)
    R = 64

    def rec_reads(kap):
        out = []
        for s in range(4):
            b = R + 32 * (kap & 1) + 8 * s
            out.append(f"ds_read_b128 v[{b}:{b+3}], v250 offset:{768 * kap + 48 * s}")
            out.append(f"ds_read_b128 v[{b+4}:{b+7}], v251 offset:{768 * kap + 48 * s}")
        return out

    for x in rec_reads(0):
        k(x)
    for kap in range(4):
        steps = [[] for _ in range(21)]
        for s in range(4):
            b = R + 32 * (kap & 1) + 8 * s
            t = 16 + 12 * s
            T, U, Y, X, P, Q = t, t + 2, t + 4, t + 6, t + 8, t + 10
            seq = [
                f"v_pk_mul_f32 v[{U}:{U+1}], v[{b}:{b+1}], v[252:253] op_sel_hi:[1,0]",
                f"v_pk_mul_f32 v[{T}:{T+1}], v[{b}:{b+1}], v[242:243] op_sel:[0,0] op_sel_hi:[1,0]",
                f"v_fract_f32 v{U+1}, v{U+1}",
                f"v_exp_f32 v{T}, v{T}",
                f"v_cos_f32 v{Y}, v{T+1}",
                f"v_sin_f32 v{Y+1}, v{T+1}",
                f"v_exp_f32 v{U}, v{U}",
                f"v_cos_f32 v{X}, v{U+1}",
                f"v_sin_f32 v{X+1}, v{U+1}",
                f"v_pk_mul_f32 v[{Y}:{Y+1}], v[{Y}:{Y+1}], v[{T}:{T+1}] op_sel:[0,0] op_sel_hi:[1,0]",
                f"v_pk_mul_f32 v[{X}:{X+1}], v[{X}:{X+1}], v[{U}:{U+1}] op_sel:[0,0] op_sel_hi:[1,0]",
            ]
            ya = pk_cmul(P, Y, b + 2, True)
            yb = pk_cmul(Q, Y, b + 4, True)
            xb = pk_cmul(T, X, b + 6)
            seq += [ya[0], yb[0], xb[0], ya[1], yb[1], xb[1]]
            seq += [f"v_cvt_pk_bf16_f32 v{192 + s}, v{X}, v{X+1}",
                    f"v_cvt_pk_bf16_f32 v{200 + s}, v{P+1}, v{P}",
                    f"v_cvt_pk_bf16_f32 v{204 + s}, v{Q+1}, v{Q}",
                    f"v_cvt_pk_bf16_f32 v{196 + s}, v{T+1}, v{T}"]
            for i, x in enumerate(seq):
                steps[i].append(x)
        flat = [x for st in steps for x in st]
        k("s_waitcnt lgkmcnt(0)")
        if kap < 3:
            flat = interleave(flat, rec_reads(kap + 1), start=4, per=0.5)
        for x in flat:
            k(x)
        c = lambda i: "0" if kap == 0 else f"v[{128+4*i}:{131+4*i}]"
        k(f"v_mfma_f32_16x16x32_bf16 v[128:131], v[192:195], v[200:203], {c(0)}")
        k(f"v_mfma_f32_16x16x32_bf16 v[132:135], v[192:195], v[204:207], {c(1)}")
        k(f"v_mfma_f32_16x16x32_bf16 v[136:139], v[196:199], v[200:203], {c(2)}")
        k(f"v_mfma_f32_16x16x32_bf16 v[140:143], v[196:199], v[204:207], {c(3)}")
    stamp(k, 2)
    k(f"""
    v_mov_b32 v22, s34
    v_mov_b32 v23, s35
    v_mul_f32 v44, s32, v22
    v_mul_f32 v46, s30, v22
    v_mul_f32 v50, s33, v23
    v_mul_f32 v52, s31, v23
    s_lshl_b32 s43, s29, 16
    s_and_b32 s44, s29, 0xffff0000
    v_mov_b32 v48, s43
    v_mov_b32 v54, s44
    v_mov_b32 v241, s40
    ds_write2_b32 v244, v128, v129 offset0:0 offset1:1
    ds_write2_b32 v246, v130, v131 offset0:0 offset1:1
    ds_write2_b32 v245, v132, v133 offset0:0 offset1:1
    ds_write2_b32 v247, v134, v135 offset0:0 offset1:1
    ds_write2_b32 v248, v136, v140 offset0:0 offset1:16
    s_mov_b64 exec, 1
    ds_write_b32 v241, v137 offset:{4 * (640 + 20 + 2)}
    s_mov_b64 exec, -1
    v_lshlrev_b32 v22, 5, v0
    s_waitcnt vmcnt(0)
    """)
    for ch in range(2):
        unpack8(k, 24, 208 + 4 * ch)
        cs = 44 + 6 * ch
        for q in range(4):
            st = 216 + 4 * q
            k(f"v_pk_fma_f32 v[{32+2*q}:{33+2*q}], v[{24+2*q}:{25+2*q}], v[{st}:{st+1}], v[{st+2}:{st+3}]")
        for q in range(4):
            k(f"v_pk_fma_f32 v[{32+2*q}:{33+2*q}], v[{32+2*q}:{33+2*q}], v[{cs}:{cs+1}], v[{cs+2}:{cs+3}] op_sel_hi:[1,0,0]")
        for q in range(4):
            k(f"v_pk_fma_f32 v[{24+2*q}:{25+2*q}], v[{32+2*q}:{33+2*q}], v[{cs+4}:{cs+5}], v[{24+2*q}:{25+2*q}] op_sel_hi:[1,0,1]")
        for q in range(4):
            k(f"v_cvt_pk_bf16_f32 v{40+q}, v{32+2*q}, v{33+2*q}")
        k(f"ds_write_b128 v22, v[24:27] offset:{F2_BASE + 8192 * ch}")
        k(f"ds_write_b128 v22, v[28:31] offset:{F2_BASE + 8192 * ch + 16}")
        k(f"ds_write_b128 v5, v[40:43] offset:{F2_HS + F2_HSZ * ch + 480}")
    k("s_waitcnt lgkmcnt(0)")
    k("s_barrier")
    for ch in range(2):
        for e in range(9):
            k(f"ds_read2st64_b32 v[{64 + 20 * ch + 2 * e}:{65 + 20 * ch + 2 * e}], v{232 + e} offset0:{22 * ch} offset1:{22 * ch + 11}")
        if ch == 0:
            k(f"""
            s_and_b32 s45, s22, 1
            v_sub_u32 v56, 15, v14
            v_lshrrev_b32 v57, 1, v56
            v_lshl_add_u32 v57, v15, 2, v57
            v_lshlrev_b32 v57, 2, v57
            v_and_b32 v56, 1, v56
            v_mov_b32 v58, {F2_KRZ}
            v_mad_u32_u24 v57, v56, v58, v57
            s_mul_i32 s46, s39, {2 * F2_KRZ}
            s_lshl_b32 s47, s45, 8
            s_add_u32 s46, s46, s47
            s_add_u32 s46, s46, {F2_KR}
            v_add_u32 v60, s46, v57
            v_add_u32 v61, 1024, v60
            v_add_u32 v62, 2048, v60
            v_add_u32 v63, 3072, v60
            s_mul_i32 s46, s39, {F2_HSZ}
            s_add_u32 s46, s46, s47
            v_lshlrev_b32 v58, 5, v14
            v_lshl_add_u32 v58, v15, 4, v58
            v_add_u32 v58, s46, v58
            s_lshl_b32 s46, s22, 12
            s_add_u32 s46, s46, {F2_BASE}
            v_lshlrev_b32 v59, 6, v14
            v_lshl_add_u32 v59, v15, 4, v59
            v_add_u32 v59, s46, v59
            """)
    for ch in range(2):
        k(f"s_waitcnt lgkmcnt({9 if ch == 0 else 2})")
        b = 16 + 10 * ch
        for e in range(9):
            k(f"v_add_f32 v{b + e}, v{64 + 20 * ch + 2 * e}, v{65 + 20 * ch + 2 * e}")
        for q in range(4):
            k(f"v_cvt_pk_bf16_f32 v{40 + 8 * ch + q}, v{b + 2*q}, v{b + 2*q + 1}")
        for q in range(4):
            k(f"v_cvt_pk_bf16_f32 v{44 + 8 * ch + q}, v{b + 2*q + 1}, v{b + 2*q + 2}")
        k(f"ds_write_b128 v5, v[{40 + 8*ch}:{43 + 8*ch}] offset:{F2_KR + 2 * F2_KRZ * ch}")
        k(f"ds_write_b128 v5, v[{44 + 8*ch}:{47 + 8*ch}] offset:{F2_KR + 2 * F2_KRZ * ch + F2_KRZ}")
    ACC = 16
    k("s_cmp_eq_u32 s45, 0")
    k("s_waitcnt lgkmcnt(0)")
    k("s_cbranch_scc0 L_f2_init1")
    for q in range(4):
        k(f"ds_read_b128 v[{ACC+4*q}:{ACC+4*q+3}], v59 offset:{1024*q}")
    for r in range(16):
        k(f"v_mov_b32 v{ACC + 16 + r}, 0")
    k("s_branch L_f2_init2")
    k("L_f2_init1:")
    for q in range(4):
        k(f"ds_read_b128 v[{ACC+16+4*q}:{ACC+16+4*q+3}], v59 offset:{1024*q}")
    for r in range(16):
        k(f"v_mov_b32 v{ACC + r}, 0")
    k("L_f2_init2:")
    k("s_barrier")
    stamp(k, 3)

    def frag_reads(rr):
        base = 64 + 64 * (rr & 1)
        a, b = [], []
        for i in range(8):
            ra = base + 4 * i
            m = 7 - i
            off = 16 * rr + 128 * (m & 1)
            a.append([f"ds_read2_b32 v[{ra}:{ra+1}], v{60 + (m >> 1)} offset0:{off} offset1:{off+1}",
                      f"ds_read2_b32 v[{ra+2}:{ra+3}], v{60 + (m >> 1)} offset0:{off+2} offset1:{off+3}"])
            rb = base + 32 + 4 * i
            b.append([f"ds_read_b128 v[{rb}:{rb+3}], v58 offset:{F2_HS + 64 * rr + 512 * i}"])
        out = []
        for i in range(8):
            out += a[i] + b[i]
        return out

    def mfmas(rr):
        base = 64 + 64 * (rr & 1)
        groups = []
        for n in range(8):
            g = []
            for i in range(n + 1):
                for (ia, ib) in {(n, i), (i, n)}:
                    if ia + ib <= 7:
                        q = ia + ib
                        g.append(f"v_mfma_f32_16x16x32_bf16 v[{ACC+4*q}:{ACC+4*q+3}], v[{base+4*ia}:{base+4*ia+3}], v[{base+32+4*ib}:{base+32+4*ib+3}], v[{ACC+4*q}:{ACC+4*q+3}]")
            groups.append(g)
        return groups

    first = frag_reads(0)
    for x in first[:12]:
        k(x)
    g0 = mfmas(0)
    rest = first[12:] + frag_reads(1)
    issued, pos = 12, 0
    for n in range(8):
        k(f"s_waitcnt lgkmcnt({min(15, issued - 3 * (n + 1))})")
        for m in g0[n]:
            k(m)
            if pos < len(rest):
                k(rest[pos])
                pos += 1
                issued += 1
    for x in rest[pos:]:
        k(x)
    for rr in range(1, 4):
        k("s_waitcnt lgkmcnt(0)")
        mm = [m for g in mfmas(rr) for m in g]
        if rr < 3:
            mm = interleave(mm, frag_reads(rr + 1), per=1.0)
        for x in mm:
            k(x)
    stamp(k, 4)
    k(f"""
    s_lshl_b32 s46, s23, 1
    s_add_u32 s46, s46, s39
    s_and_b32 s47, s46, 7
    s_lshl_b32 s46, s46, 8
    s_lshl_b32 s48, s45, 20
    s_add_u32 s46, s46, s48
    s_add_u32 s46, s46, {WS_X1T}
    v_and_b32 v56, 7, v14
    v_xor_b32 v56, s47, v56
    v_lshlrev_b32 v56, 5, v56
    v_lshl_add_u32 v56, v15, 3, v56
    v_lshrrev_b32 v57, 3, v14
    v_lshl_add_u32 v56, v57, 17, v56
    v_add_u32 v56, s46, v56
    s_lshl_b32 s46, s22, 12
    s_add_u32 s46, s46, {F2_BASE}
    v_lshlrev_b32 v57, 4, v1
    v_add_u32 v58, s46, v57
    s_xor_b32 s46, s22, 1
    s_lshl_b32 s46, s46, 12
    s_add_u32 s46, s46, {F2_BASE}
    v_add_u32 v59, s46, v57
    s_cmp_eq_u32 s45, 0
    s_cbranch_scc0 L_f2_x1
    """)
    for q in range(4):
        k(f"ds_write_b128 v58, v[{ACC+16+4*q}:{ACC+16+4*q+3}] offset:{1024*q}")
    k("s_branch L_f2_x2")
    k("L_f2_x1:")
    for q in range(4):
        k(f"ds_write_b128 v58, v[{ACC+4*q}:{ACC+4*q+3}] offset:{1024*q}")
    k("s_waitcnt lgkmcnt(0)")
    for r in range(8):
        k(f"v_pk_mov_b32 v[{ACC+2*r}:{ACC+2*r+1}], v[{ACC+16+2*r}:{ACC+17+2*r}], v[{ACC+16+2*r}:{ACC+17+2*r}] op_sel:[0,1]")
    k("L_f2_x2:")
    k("s_waitcnt lgkmcnt(0)")
    k("s_barrier")
    for q in range(4):
        k(f"ds_read_b128 v[{64+4*q}:{67+4*q}], v59 offset:{1024*q}")
    for q in range(4):
        k(f"s_waitcnt lgkmcnt({3 - q})")
        k(f"v_pk_add_f32 v[{ACC+4*q}:{ACC+4*q+1}], v[{ACC+4*q}:{ACC+4*q+1}], v[{64+4*q}:{65+4*q}]")
        k(f"v_pk_add_f32 v[{ACC+4*q+2}:{ACC+4*q+3}], v[{ACC+4*q+2}:{ACC+4*q+3}], v[{66+4*q}:{67+4*q}]")
        k(f"v_cvt_pk_bf16_f32 v{80+2*q}, v{ACC+4*q}, v{ACC+4*q+1}")
        k(f"v_cvt_pk_bf16_f32 v{81+2*q}, v{ACC+4*q+2}, v{ACC+4*q+3}")
        k(f"global_store_dwordx2 v56, v[{80+2*q}:{81+2*q}], s[20:21]")
        if q < 3:
            k(f"v_add_u32 v56, 0x40000, v56")
    stamp_out(k, 1, "s[20:21]", 6, 90)
    k("s_endpgm")


P_S1 = 4160
P_W2 = 4 * P_S1


def gen_f2_prep(k):
    k(f"""
    s_load_dwordx4 s[4:7], s[0:1], {KA_WG}
    s_load_dwordx2 s[8:9], s[0:1], {KA_WD}
    s_load_dwordx2 s[20:21], s[0:1], {KA_WS}
    v_and_b32 v1, 63, v0
    v_lshrrev_b32 v2, 6, v0
    v_readfirstlane_b32 s22, v2
    s_sub_u32 s10, s2, 256
    s_and_b32 s11, s10, 7
    s_lshr_b32 s12, s10, 3
    s_and_b32 s13, s11, 3
    s_lshr_b32 s14, s11, 2
    s_mul_i32 s14, s14, 28
    s_add_u32 s14, s14, s12
    s_mul_i32 s15, s13, {128 * 3584}
    s_lshl_b32 s16, s14, 6
    s_add_u32 s15, s15, s16
    v_lshrrev_b32 v3, 2, v0
    v_and_b32 v4, 3, v0
    v_mul_u32_u24 v5, 3584, v3
    v_lshl_add_u32 v5, v4, 4, v5
    v_add_u32 v5, s15, v5
    v_add_u32 v6, {64 * 3584}, v5
    s_lshl_b32 s15, s12, 16
    s_lshl_b32 s16, s11, 7
    s_add_u32 s15, s15, s16
    v_lshrrev_b32 v7, 3, v0
    v_lshlrev_b32 v7, 10, v7
    v_and_b32 v8, 7, v0
    v_lshl_add_u32 v7, v8, 4, v7
    v_add_u32 v7, s15, v7
    v_add_u32 v8, 0x8000, v7
    s_lshl_b32 s17, s22, 10
    s_add_u32 s17, s17, {P_W2}
    s_add_u32 s18, s17, 4096
    v_lshrrev_b32 v15, 4, v1
    s_lshl_b32 s15, s13, 8
    s_add_u32 s15, s15, {WS_MODB + 3 * 1024}
    v_lshlrev_b32 v9, 3, v15
    v_add_u32 v9, s15, v9
    s_lshl_b32 s15, s13, 9
    s_add_u32 s15, s15, {WS_MODF + 4 * 2048}
    v_lshlrev_b32 v10, 4, v15
    v_add_u32 v10, s15, v10
    s_waitcnt lgkmcnt(0)
    global_load_dwordx4 v[16:19], v5, s[4:5]
    global_load_dwordx4 v[20:23], v5, s[6:7]
    global_load_dwordx4 v[24:27], v6, s[4:5]
    global_load_dwordx4 v[28:31], v6, s[6:7]
    s_mov_b32 m0, s17
    global_load_lds_dwordx4 v7, s[8:9]
    s_mov_b32 m0, s18
    global_load_lds_dwordx4 v8, s[8:9]
    """)
    for i in range(8):
        k(f"global_load_dwordx2 v[{48+2*i}:{49+2*i}], v9, s[20:21] offset:{32*i}")
    for i in range(8):
        k(f"global_load_dwordx4 v[{64+4*i}:{67+4*i}], v10, s[20:21] offset:{64*i}")
    k(f"""
    v_mul_u32_u24 v11, {P_S1}, v4
    v_lshl_add_u32 v11, v3, 5, v11
    s_mul_i32 s15, s22, {P_S1}
    v_lshlrev_b32 v12, 3, v1
    v_add_u32 v12, s15, v12
    v_bfe_u32 v13, v1, 2, 2
    v_lshlrev_b32 v13, 7, v13
    v_and_b32 v114, 3, v1
    v_lshl_add_u32 v13, v114, 4, v13
    v_and_b32 v114, 1, v15
    v_lshl_add_u32 v13, v114, 3, v13
    v_lshrrev_b32 v114, 1, v15
    v_lshl_add_u32 v13, v114, 6, v13
    s_lshl_b32 s15, s22, 11
    s_add_u32 s15, s15, {P_W2}
    v_add_u32 v13, s15, v13
    s_lshl_b32 s15, s14, 2
    s_add_u32 s15, s15, s22
    s_mul_i32 s16, s15, 4682
    s_lshr_b32 s16, s16, 16
    s_mul_i32 s19, s16, {16 * 14 - 14}
    s_add_u32 s19, s19, s15
    s_mul_i32 s23, s13, 56
    s_add_u32 s19, s19, s23
    s_lshl_b32 s19, s19, 10
    s_add_u32 s19, s19, {WS_W1P}
    v_lshlrev_b32 v14, 4, v1
    v_add_u32 v112, {WS_W2P}, v14
    v_add_u32 v14, s19, v14
    s_mul_i32 s19, s11, 224
    s_lshl_b32 s23, s12, 3
    s_add_u32 s19, s19, s23
    s_lshl_b32 s23, s22, 1
    s_add_u32 s19, s19, s23
    s_lshl_b32 s19, s19, 10
    v_add_u32 v112, s19, v112
    s_lshl_b32 s15, s15, 10
    s_lshl_b32 s23, s13, 8
    s_add_u32 s15, s15, s23
    s_add_u32 s15, s15, {WS_W1A}
    v_lshlrev_b32 v113, 4, v1
    v_add_u32 v113, s15, v113
    v_mov_b32 v116, 0x3f803f80
    v_mov_b32 v117, 0x3f803f80
    v_mov_b32 v118, 0x3f803f80
    v_mov_b32 v119, 0x3f803f80
    """)
    for p in range(2):
        k(f"s_waitcnt vmcnt({20 - 2 * p})")
        g, u = 16 + 8 * p, 20 + 8 * p
        for h in range(2):
            k(f"v_pk_mov_b32 v[{32+4*h}:{33+4*h}], v[{g+2*h}:{g+2*h+1}], v[{u+2*h}:{u+2*h+1}] op_sel:[0,0]")
            k(f"v_pk_mov_b32 v[{34+4*h}:{35+4*h}], v[{g+2*h}:{g+2*h+1}], v[{u+2*h}:{u+2*h+1}] op_sel:[1,1]")
        k(f"ds_write_b128 v11, v[32:35] offset:{2048 * p}")
        k(f"ds_write_b128 v11, v[36:39] offset:{2048 * p + 16}")
        k("s_waitcnt lgkmcnt(0)")
    k("s_waitcnt vmcnt(16)")
    k("s_barrier")
    stamp(k, 1)
    for s in range(4):
        for j in range(2):
            k(f"ds_read_b64_tr_b16 v[{16+4*s+2*j}:{17+4*s+2*j}], v12 offset:{1024*s + 512*j}")
    for f in range(2):
        for j in range(2):
            k(f"ds_read_b64_tr_b16 v[{96+4*f+2*j}:{97+4*f+2*j}], v13 offset:{1024*f + 512*j}")
    k("s_waitcnt lgkmcnt(0)")
    k("global_store_dwordx4 v112, v[96:99], s[20:21]")
    k("global_store_dwordx4 v112, v[100:103], s[20:21] offset:1024")
    k("s_waitcnt vmcnt(2)")
    for s in range(4):
        w = 16 + 4 * s
        c = "0" if s == 0 else "v[108:111]"
        k(f"v_mfma_f32_16x16x32_bf16 v[108:111], v[{48+4*s}:{51+4*s}], v[{w}:{w+3}], {c}")
        unpack8(k, 32, w)
        for q in range(4):
            k(f"v_pk_mul_f32 v[{32+2*q}:{33+2*q}], v[{32+2*q}:{33+2*q}], v[{64+8*s+2*q}:{65+8*s+2*q}]")
        o = 40 + 4 * (s & 1)
        for q in range(4):
            k(f"v_cvt_pk_bf16_f32 v{o+q}, v{32+2*q}, v{33+2*q}")
        c = "0" if s == 0 else "v[104:107]"
        k(f"v_mfma_f32_16x16x32_bf16 v[104:107], v[116:119], v[{o}:{o+3}], {c}")
        k(f"global_store_dwordx4 v14, v[{o}:{o+3}], s[20:21]")
        if s < 3:
            k(f"v_add_u32 v14, {14 * 1024}, v14")
    k(f"""
    v_cvt_pk_bf16_f32 v33, v108, v104
    v_lshlrev_b32 v34, 16, v33
    v_and_b32 v32, 0xffff0000, v33
    v_sub_f32 v109, v108, v34
    v_sub_f32 v105, v104, v32
    v_cvt_pk_bf16_f32 v34, v34, v109
    v_cvt_pk_bf16_f32 v32, v32, v105
    v_mov_b32 v35, v34
    v_mov_b32 v33, v32
    s_mov_b64 exec, 0xffff
    global_store_dwordx4 v113, v[32:35], s[20:21]
    """)
    stamp_out(k, 1, "s[20:21]", 6, 120)


def gen_f2():
    k = Kernel("f2_kernel")
    stamp(k, 0)
    k("s_cmp_ge_u32 s2, 480")
    k("s_cbranch_scc1 L_f2_end")
    k("s_cmp_ge_u32 s2, 256")
    k("s_cbranch_scc1 L_f2_prep")
    gen_f2_conv(k)
    k("L_f2_prep:")
    gen_f2_prep(k)
    k("L_f2_end:")
    k("s_endpgm")
    return k


G_SLOT = 45056
G_TAB = 3 * G_SLOT
G_X = G_TAB + 4096
G_LDS = G_X + 8192
G_RING = 9
SPIN_MAX = 400000


class VM:
    def __init__(self, k):
        self.k = k
        self.tags = []

    def emit(self, items):
        for it in items:
            if isinstance(it, tuple):
                self.tags.append(it[1])
                self.k(it[0])
            elif callable(it):
                it()
            else:
                self.k(it)

    def count(self, tag):
        last = max(i for i, t in enumerate(self.tags) if t == tag)
        return min(63, len(self.tags) - 1 - last)

    def wait(self, tag, extra=""):
        self.k(f"s_waitcnt vmcnt({self.count(tag)}){extra}")


def merge(a, b):
    out, i, j = [], 0, 0
    while i < len(a) or j < len(b):
        if j >= len(b) or (i < len(a) and i * len(b) <= j * len(a)):
            out.append(a[i]); i += 1
        else:
            out.append(b[j]); j += 1
    return out


def front(main, rds, late, mem, other):
    n = len(main)
    slots = [[] for _ in range(n)]
    rate = max(1, -(-len(rds) // max(1, n - 4)))
    for i, r in enumerate(rds):
        slots[min(n - 1, i // rate)].append(r)
    nr = -(-len(rds) // rate)
    for i, x in enumerate(late):
        slots[min(n - 1, nr + i)].append(x)
    nv = sum(isinstance(x, tuple) for x in mem)
    kv, held, prev = 0, [], 0
    for x in mem:
        if isinstance(x, tuple):
            g = min(n - 1, int((kv + 0.5) * n / nv))
            for j, h in enumerate(held):
                prev = max(prev, g - len(held) + j)
                slots[prev].append(h)
            held = []
            prev = max(prev, g)
            slots[prev].append(x)
            kv += 1
        else:
            held.append(x)
    slots[n - 1] += held
    cap = (sum(len(x) for x in slots) + len(other)) / n
    i, acc = 0, 0.0
    out = []
    for j in range(n):
        out.append(main[j])
        out += slots[j]
        acc += cap - len(slots[j])
        while i < len(other) and acc >= 0.5:
            out.append(other[i]); i += 1; acc -= 1
    return out + other[i:]


def lines(t):
    return [x.strip() for x in t.strip().split("\n") if x.strip()]


def gen_g():
    k = Kernel("g_kernel")
    vm = VM(k)
    ACC = 16
    GR = 128
    FR = 144
    ONE = 232
    S = 236
    H = 244
    AU = 224
    BP = Opt.g_bp
    stamp(k, 0)
    k(f"""
    s_load_dwordx2 s[4:5], s[0:1], {KA_WS}
    s_load_dwordx2 s[6:7], s[0:1], {KA_OUT}
    s_cmp_ge_u32 s2, 256
    s_cbranch_scc1 L_g_end
    v_and_b32 v1, 63, v0
    v_lshrrev_b32 v2, 6, v0
    v_lshlrev_b32 v3, 4, v1
    v_readfirstlane_b32 s22, v2
    s_and_b32 s16, s2, 1
    s_lshl_b32 s16, s16, 3
    s_bfe_u32 s17, s2, 0x30003
    s_add_u32 s16, s16, s17
    s_and_b32 s17, s2, 6
    s_lshl_b32 s17, s17, 1
    s_lshr_b32 s25, s2, 6
    s_add_u32 s17, s17, s25
    s_lshl_b32 s18, s16, 17
    s_add_u32 s18, s18, {WS_X1T}
    s_mul_i32 s19, s17, {16 * 14 * 1024}
    s_add_u32 s19, s19, {WS_W1P}
    s_lshl_b32 s23, s22, 11
    s_lshl_b32 s24, s22, 12
    s_mul_i32 s29, s22, 3072
    s_add_u32 s29, s29, 16384
    v_add_u32 v4, s23, v3
    v_add_u32 v5, s24, v3
    v_add_u32 v6, s29, v3
    s_mov_b32 s10, 131072
    s_mov_b32 s11, 0x20000
    s_mov_b32 s14, {16 * 14 * 1024}
    s_mov_b32 s15, 0x20000
    s_lshr_b32 s28, s17, 1
    s_mov_b32 s33, s28
    s_waitcnt lgkmcnt(0)
    s_add_u32 s8, s4, s18
    s_addc_u32 s9, s5, 0
    s_add_u32 s12, s4, s19
    s_addc_u32 s13, s5, 0
    """)

    def part(s):
        base = (s // 2 % 3) * G_SLOT
        t = f"p{s}"
        if s % 2 == 0:
            a = ["s_lshl_b32 s26, s28, 14", f"s_add_u32 m0, s23, {base}", "s_mul_i32 s27, s28, 28672"]
            a += [(f"buffer_load_dwordx4 v4, s[8:11], s26 offen offset:{1024*i} lds", t) for i in range(2)]
            a += [f"s_add_u32 m0, s24, {base + 16384}", "s_add_u32 s26, s26, 8192"]
            a += [(f"buffer_load_dwordx4 v5, s[12:15], s27 offen offset:{1024*i} lds", t) for i in range(4)]
            return a
        b = [f"s_add_u32 m0, s23, {base + 8192}", "s_add_u32 s28, s28, 1"]
        b += [(f"buffer_load_dwordx4 v4, s[8:11], s26 offen offset:{1024*i} lds", t) for i in range(2)]
        b += [f"s_add_u32 m0, s29, {base + 16384}", "s_and_b32 s28, s28, 7"]
        b += [(f"buffer_load_dwordx4 v6, s[12:15], s27 offen offset:{1024*i} lds", t) for i in range(3)]
        return b

    def take(q, n):
        out = []
        while q and n > 0:
            x = q.pop(0)
            out.append(x)
            n -= isinstance(x, tuple)
        return out

    raddr = lines(f"""
    s_and_b32 s30, s22, 1
    s_lshl_b32 s31, s22, 1
    s_and_b32 s32, s17, 1
    s_or_b32 s31, s31, s32
    v_lshrrev_b32 v9, 2, v1
    v_and_b32 v14, 7, v9
    v_xor_b32 v14, s31, v14
    v_lshlrev_b32 v9, 8, v9
    v_and_b32 v15, 3, v1
    v_lshl_add_u32 v9, v15, 3, v9
    """)
    for u in range(4):
        raddr += [f"v_xor_b32 v15, {u}, v14", f"v_lshl_add_u32 v{10+u}, v15, 5, v9"]
    raddr += lines(f"""
    s_mul_i32 s32, s30, 7168
    s_add_u32 s32, s32, 16384
    v_add_u32 v14, s32, v3
    """)
    raddr += [f"v_mov_b32 v{ONE + r}, 0x3f803f80" for r in range(4)]
    saddr = lines(f"""
    v_and_b32 v252, 15, v1
    v_lshrrev_b32 v253, 4, v1
    v_and_b32 v15, 3, v1
    v_cmp_eq_u32 s[46:47], 1, v15
    v_cmp_eq_u32 s[48:49], 2, v15
    v_cmp_eq_u32 s[50:51], 3, v15
    v_bfe_u32 v15, v1, 2, 2
    v_cmp_eq_u32 s[52:53], v253, v15
    s_lshl_b32 s25, s16, 3
    s_add_u32 s25, s25, s31
    s_lshl_b32 s25, s25, 10
    s_lshl_b32 s32, s33, 7
    s_add_u32 s32, s32, s25
    s_add_u32 s32, s32, {WS_STP}
    v_lshlrev_b32 v15, 3, v252
    v_add_u32 v254, s32, v15
    v_lshlrev_b32 v255, 10, v253
    v_xor_b32 v255, s25, v255
    v_add_u32 v255, v255, v15
    v_add_u32 v255, {WS_STP}, v255
    """)
    p2addr = [
        "s_and_b32 s34, s2, 7", "s_lshl_b32 s34, s34, 2", "s_bfe_u32 s35, s2, 0x20003", "s_add_u32 s34, s34, s35",
        "s_lshr_b32 s35, s2, 5", f"s_mul_i32 s25, s34, {224 * 1024}", f"s_add_u32 s25, s25, {WS_HH}",
        "s_add_u32 s36, s4, s25\ns_addc_u32 s37, s5, 0", f"s_mov_b32 s38, {224 * 1024}", "s_mov_b32 s39, 0x20000",
        f"s_mul_i32 s25, s35, {224 * 1024}", f"s_add_u32 s25, s25, {WS_W2P}",
        "s_add_u32 s40, s4, s25\ns_addc_u32 s41, s5, 0", f"s_mov_b32 s42, {224 * 1024}", "s_mov_b32 s43, 0x20000",
        f"s_mul_i32 s44, s22, {56 * 1024}", "s_mov_b32 s45, s44"]
    eaddr = lines(f"""
    s_mul_i32 s57, s17, 14
    s_mul_i32 s32, s30, 7
    s_add_u32 s57, s57, s32
    s_lshl_b32 s54, s16, 1
    s_lshr_b32 s25, s22, 1
    s_add_u32 s54, s54, s25
    s_mul_i32 s58, s54, 224
    s_add_u32 s58, s58, s57
    s_lshl_b32 s58, s58, 10
    s_add_u32 s58, s58, {WS_HH}
    s_lshl_b32 s57, s57, 10
    s_add_u32 s57, s57, {WS_W1A + 3072}
    s_and_b32 s59, s31, 3
    s_lshl_b32 s59, s59, 8
    s_lshl_b32 s54, s54, 2
    s_lshr_b32 s32, s17, 2
    s_add_u32 s54, s54, s32
    s_lshl_b32 s54, s54, 8
    s_add_u32 s54, s54, {WS_CNT}
    """)
    xaddr = lines(f"""
    v_lshrrev_b32 v7, 3, v1
    v_lshl_add_u32 v7, v2, 4, v7
    v_lshlrev_b32 v7, 8, v7
    v_lshrrev_b32 v9, 5, v1
    s_and_b32 s25, s34, 1
    v_xor_b32 v9, s25, v9
    v_lshl_add_u32 v7, v9, 7, v7
    v_and_b32 v9, 7, v1
    v_lshl_add_u32 v7, v9, 4, v7
    s_lshr_b32 s25, s34, 1
    s_lshl_b32 s25, s25, 17
    s_lshl_b32 s32, s35, 14
    s_add_u32 s25, s25, s32
    s_add_u32 s25, s25, {WS_X1T}
    v_add_u32 v7, s25, v7
    v_add_u32 v9, 2048, v7
    v_lshlrev_b32 v8, 4, v252
    v_lshl_add_u32 v8, v253, 10, v8
    v_add_u32 v15, s57, v3
    """)
    early = raddr + saddr + p2addr + eaddr + xaddr
    stamp(k, 9)
    queue = [x for s in range(16) for x in part(s)]
    vm.emit(take(queue, 6))
    if Opt.g_pbar & 1:
        k("s_barrier")
    vm.emit(merge(take(queue, Opt.g_pre - 6), early))
    stamp(k, 10)

    publish = [
        f"v_cndmask_b32 v{GR}, v{GR}, v{GR+1}, s[46:47]",
        f"v_cndmask_b32 v{GR}, v{GR}, v{GR+2}, s[48:49]",
        f"v_cndmask_b32 v{GR}, v{GR}, v{GR+3}, s[50:51]",
        f"v_or_b32 v{GR+5}, 0x80000000, v{GR}",
        (f"s_mov_b64 exec, s[52:53]\nglobal_store_dwordx2 v254, v[{GR+4}:{GR+5}], s[4:5] sc1\ns_mov_b64 exec, -1", "pub"),
    ]
    gather = [(f"global_load_dwordx2 v[{GR+2*i}:{GR+2*i+1}], v255, s[4:5] offset:{128*i} sc1", "gat") for i in range(8)]
    check = [f"v_and_b32 v{S}, v{GR+1}, v{GR+3}", f"v_and_b32 v{S+1}, v{GR+5}, v{GR+7}",
             f"v_and_b32 v{S+2}, v{GR+9}, v{GR+11}", f"v_and_b32 v{S+3}, v{GR+13}, v{GR+15}",
             f"v_and_b32 v{S}, v{S}, v{S+1}", f"v_and_b32 v{S+2}, v{S+2}, v{S+3}",
             f"v_and_b32 v{S}, v{S}, v{S+2}", f"v_cmp_le_i32 vcc, 0, v{S}"]
    stats1 = [lambda: vm.wait("gat")] + check + ["s_cbranch_vccnz L_g_retry\nL_g_ok:"]
    stats2 = [f"v_add_f32 v{GR+r}, v{GR+r}, v{GR+step+r}" for step in (8, 4, 2) for r in range(step)]
    stats3 = lines(f"""
    v_mul_f32 v{GR}, {fbits(-1.0 / 512)}, v{GR}
    v_mul_f32 v{GR+1}, {fbits(-1.0 / 512)}, v{GR+1}
    v_cvt_pk_bf16_f32 v{S}, v{GR}, v{GR}
    v_fma_f32 v{GR+1}, -v{GR}, v{GR}, v{GR+1}
    v_lshlrev_b32 v{GR+2}, 16, v{S}
    v_max_f32 v{GR+1}, 0, v{GR+1}
    v_sub_f32 v{GR+2}, v{GR}, v{GR+2}
    v_add_f32 v{GR+1}, {fbits(1e-5)}, v{GR+1}
    v_sqrt_f32 v{GR+1}, v{GR+1}
    v_cvt_pk_bf16_f32 v{S+1}, v{GR+2}, v{GR+2}
    s_lshl_b32 s25, s22, 10
    s_add_u32 s25, s25, {G_TAB}
    v_cvt_pk_bf16_f32 v{S+2}, v{GR+1}, v{GR+1}
    v_add_u32 v4, s25, v3
    v_lshlrev_b32 v{GR+2}, 16, v{S+2}
    v_sub_f32 v{GR+2}, v{GR+1}, v{GR+2}
    v_cvt_pk_bf16_f32 v{S+3}, v{GR+2}, v{GR+2}
    ds_write_b128 v4, v[{S}:{S+3}]
    v_lshlrev_b32 v4, 4, v252
    v_add_u32 v4, s25, v4
    """)
    stats4 = [f"ds_read_b128 v[{GR+4*u}:{GR+4*u+3}], v4 offset:{256*u}" for u in range(4)]
    stats4 += ["v_xor_b32 v5, s59, v3", "v_add_u32 v5, s58, v5", "v_add_u32 v6, 4096, v5"]
    tailq = [(f"global_load_dwordx4 a[{AU+4*i}:{AU+4*i+3}], v15, s[4:5] offset:{1024*i - 3072}", "aug") for i in range(7)]
    tailq += [f"s_add_u32 m0, s23, {G_X}", ("global_load_lds_dwordx4 v7, s[4:5]", "xr"),
              f"s_add_u32 m0, s23, {G_X + 1024}", ("global_load_lds_dwordx4 v9, s[4:5]", "xr")]
    for n in range(56):
        if n and n & 3 == 0:
            tailq.append("s_add_u32 s44, s44, 4096")
        tailq.append((f"buffer_load_dwordx4 a[{4*n}:{4*n+3}], v8, s[40:43], s44 offen offset:{256*(n & 3)}", "w2"))

    def reads(s):
        b = FR + 44 * (s & 1)
        ks = s & 1
        xs, wsr = [], []
        for u in range(4):
            for j in range(2):
                xs.append(f"ds_read_b64_tr_b16 v[{b+4*u+2*j}:{b+4*u+2*j+1}], v{10+u} offset:{8192*ks + 4096*j}")
        for i in range(7):
            wsr.append(f"ds_read_b128 v[{b+16+4*i}:{b+19+4*i}], v14 offset:{14336*ks + 1024*i}")
        return wsr[:1] + xs + wsr[1:]

    def mft(s, i, rev=None):
        b = FR + 44 * (s & 1)
        out = []
        for u in (range(3, -1, -1) if (i % 2 if rev is None else rev) else range(4)):
            a = ACC + 16 * i + 4 * u
            c = "0" if s == 0 else f"v[{a}:{a+3}]"
            if s == 16:
                out.append(f"v_mfma_f32_16x16x32_bf16 v[{a}:{a+3}], a[{AU+4*i}:{AU+4*i+3}], v[{GR+4*u}:{GR+4*u+3}], {c}")
            else:
                out.append(f"v_mfma_f32_16x16x32_bf16 v[{a}:{a+3}], v[{b+16+4*i}:{b+19+4*i}], v[{b+4*u}:{b+4*u+3}], {c}")
        return out

    def mf(s):
        b = FR + 44 * (s & 1)
        out = [x for i in range(7) for x in mft(s, i)]
        if s < 2:
            x = f"v[{b}:{b+3}]"
            c0 = "0" if s == 0 else f"v[{GR}:{GR+3}]"
            c1 = "0" if s == 0 else f"v[{GR+4}:{GR+7}]"
            out.insert(8, f"v_mfma_f32_16x16x32_bf16 v[{GR}:{GR+3}], {x}, {x}, {c0}")
            out.insert(9, f"v_mfma_f32_16x16x32_bf16 v[{GR+4}:{GR+7}], v[{ONE}:{ONE+3}], {x}, {c1}")
        return out

    def epi(i):
        h = H + 4 * (i & 1)
        acc = [ACC + 16 * i + 4 * u for u in range(4)]
        out = []
        for u in (0, 2, 1, 3):
            out += [f"v_mul_f32 v{acc[u]+r}, v{acc[u]+r}, v{acc[u]+2+r}" for r in range(2)]
        for u in (0, 2, 1, 3):
            out.append(f"v_cvt_pk_bf16_f32 v{h+u}, v{acc[u]}, v{acc[u]+1}")
        out += [f"v_permlane32_swap_b32 v{h}, v{h+2}", f"v_permlane32_swap_b32 v{h+1}, v{h+3}",
                f"v_permlane16_swap_b32 v{h}, v{h+1}", f"v_permlane16_swap_b32 v{h+2}, v{h+3}"]
        out.append((f"global_store_dwordx4 v{5 + (i >> 2)}, v[{h}:{h+3}], s[4:5] offset:{1024 * (i & 3)} sc1", "hh"))
        return out

    vm.wait("p0")
    k("s_barrier")
    stamp(k, 1)
    for x in reads(0):
        k(x)
    vm.emit(take(queue, Opt.g_pre2))
    G0 = Opt.g_gat
    extra = {2: publish, G0: gather[:4], G0 + 1: gather[4:], 11: stats1, 12: stats2, 13: stats3, 14: stats4}
    done = [sum(6 - (t & 1) for t in range(s + 1)) for s in range(16)]
    FINE = Opt.g_fine
    for s in range(15):
        issued = sum(t.startswith("p") and t != "pub" for t in vm.tags)
        bar = s < FINE or s % 2 == 1
        bp = (Opt.g_bp0 if s < Opt.g_nbp0 else BP) if bar else 0
        free_before = (s + 4) if s % 2 == 1 else (s + 5)
        free_after = s + 6 if s % 2 == 1 else s + 5
        want = done[min(15, s + Opt.g_la, free_after)] - issued
        mem = take(queue, min(want, Opt.g_rate)) if queue else []
        nmem = sum(isinstance(x, tuple) for x in mem)
        if not queue:
            mem += take(tailq, Opt.g_trate - nmem)
        assert not (queue and s >= 12)
        adv = []
        if s % 2 == 0 and s < 14:
            step = G_SLOT if (s // 2) % 3 != 2 else -2 * G_SLOT
            adv = [f"v_add_u32 v{r}, {step & 0xffffffff}, v{r}" for r in range(10, 15)]
        m = mf(s)
        nm = sum(isinstance(x, tuple) for x in mem)
        head = take(mem, max(0, min(nm * bp // len(m), done[min(15, free_before)] - issued)))
        k("s_waitcnt lgkmcnt(0)")
        if bar:
            vm.emit(front(m[:bp], [], [], head, []) if bp else head)
            upto = s + 1 if s + 1 < FINE else min(15, s + 2)
            assert vm.tags.count(f"p{upto}") == 6 - (upto & 1), s
            vm.wait(f"p{upto}")
            k("s_barrier")
        vm.emit(front(m[bp:], reads(s + 1), adv, mem, extra.get(s, [])))
        if Opt.g_steps:
            stamp(k, s + 1, True)
        elif s in (1, 7, 11):
            stamp(k, {1: 12, 7: 13, 11: 14}[s])
    assert not queue
    vm.wait("aug", " lgkmcnt(0)")
    k("s_barrier")
    stamp(k, 15)
    vm.emit(mft(16, 0, False) + mft(16, 1, True) + mft(15, 0, False))
    for i in range(1, 7):
        c = (mft(16, i + 1, True) if i < 6 else []) + mft(15, i, False)
        e = epi(i - 1) + take(tailq, Opt.g_w2epi)
        vm.emit(c[:2] + interleave(c[2:], e))
    stamp(k, 2)
    vm.emit(epi(6))
    stamp(k, 3)
    vm.emit(take(tailq, Opt.g_w2drain))
    k("v_mov_b32 v7, s54")
    k("v_mov_b32 v9, 1")
    vm.wait("hh")
    vm.emit([("s_mov_b64 exec, 1\nglobal_atomic_add v7, v9, s[4:5] sc1\ns_mov_b64 exec, -1", "arr")])
    stamp(k, 4)
    vm.emit(take(tailq, 99))
    GB = 240
    R2 = 224
    k(f"""
    s_lshl_b32 s25, s35, 8
    s_add_u32 s25, s25, {WS_MODF + 5 * 2048}
    v_lshlrev_b32 v9, 5, v253
    v_add_u32 v9, s25, v9
    v_mov_b32 v3, v252
    v_mov_b32 v4, v253
    """)
    for i in range(4):
        k(f"global_load_dwordx4 v[{GB+4*i}:{GB+4*i+3}], v9, s[4:5] offset:{128*(i>>1) + 16*(i&1)}")
    for u in range(4):
        k(f"v_xor_b32 v9, {u}, v2")
        k(f"v_lshl_add_u32 v{10+u}, v9, 8, v8")
    k(f"""
    s_lshl_b32 s55, s34, 2
    s_add_u32 s55, s55, s22
    s_lshl_b32 s25, s55, 10
    s_add_u32 s25, s25, {WS_STP}
    v_lshlrev_b32 v14, 3, v3
    v_lshl_add_u32 v14, v4, 8, v14
    v_add_u32 v14, s25, v14
    s_lshl_b32 s55, s55, 8
    s_add_u32 s55, s55, {WS_CNT}
    v_mov_b32 v7, s55
    s_mov_b32 s25, 0
    L_g_poll:
    global_load_dword v9, v7, s[4:5] sc1
    s_add_u32 s25, s25, 1
    s_cmp_gt_u32 s25, {SPIN_MAX}
    s_cbranch_scc1 L_g_go
    s_waitcnt vmcnt(0)
    v_cmp_ne_u32 vcc, 8, v9
    s_cbranch_vccnz L_g_poll
    L_g_go:
    """)
    stamp(k, 5)
    vm = VM(k)
    RG = 80

    def hloads(ks):
        b = RG + 16 * (ks % G_RING)
        out = ["s_add_u32 s45, s45, 4096"] if ks else []
        return out + [(f"buffer_load_dwordx4 v[{b+4*u}:{b+4*u+3}], v{10+u}, s[36:39], s45 offen sc1", f"h{ks}") for u in range(4)]

    def mf2(ks, order=(0, 1, 2, 3)):
        b = RG + 16 * (ks % G_RING)
        out = []
        for n, u in enumerate(order):
            for dt in (range(4) if n % 2 == 0 else range(3, -1, -1)):
                a = ACC + 16 * u + 4 * dt
                c = "0" if ks == 0 else f"v[{a}:{a+3}]"
                out.append(f"v_mfma_f32_16x16x32_bf16 v[{a}:{a+3}], a[{16*ks+4*dt}:{16*ks+4*dt+3}], v[{b+4*u}:{b+4*u+3}], {c}")
        return out

    r2ld = [(f"global_load_dwordx2 v[{R2+2*i}:{R2+2*i+1}], v14, s[4:5] offset:{128*i} sc1", "r2") for i in range(2)]
    r2a = [lambda: vm.wait("r2"), f"v_add_f32 v{R2}, v{R2}, v{R2+2}", f"v_add_f32 v{R2+1}, v{R2+1}, v{R2+3}"]
    for sw in (16, 32):
        r2a += [f"v_mov_b32 v{R2+2}, v{R2}", f"v_mov_b32 v{R2+3}, v{R2+1}",
                f"v_permlane{sw}_swap_b32 v{R2}, v{R2+2}", f"v_permlane{sw}_swap_b32 v{R2+1}, v{R2+3}",
                f"v_add_f32 v{R2}, v{R2}, v{R2+2}", f"v_add_f32 v{R2+1}, v{R2+1}, v{R2+3}"]
    r2b = lines(f"""
    v_mul_f32 v{R2}, {fbits(-1.0 / 512)}, v{R2}
    v_mul_f32 v{R2+1}, {fbits(-1.0 / 512)}, v{R2+1}
    v_fma_f32 v{R2+1}, -v{R2}, v{R2}, v{R2+1}
    v_max_f32 v{R2+1}, 0, v{R2+1}
    v_add_f32 v{R2+1}, {fbits(1e-5)}, v{R2+1}
    v_rcp_f32 v{R2+1}, v{R2+1}
    """)
    r2c = [f"v_mul_f32 v{GB+r}, v{GB+r}, v{R2+1}" for r in range(16)]
    raddr2 = ["v_lshlrev_b32 v13, 4, v1", "s_lshl_b32 s20, s22, 14", "s_lshl_b32 s21, s22, 12"]
    for u in range(1, 4):
        raddr2 += [f"s_xor_b32 s24, s22, {u}", "s_lshl_b32 s25, s24, 12", "s_add_u32 s25, s25, s20",
                   f"v_add_u32 v{8+u}, s25, v13", "s_lshl_b32 s25, s24, 14", "s_add_u32 s25, s25, s21",
                   f"v_add_u32 v{4+u}, s25, v13"]
    raddr3 = lines(f"""
    v_bfe_u32 v15, v1, 2, 2
    v_xor_b32 v14, s22, v15
    v_lshlrev_b32 v14, 5, v14
    v_lshl_add_u32 v15, v4, 3, v15
    v_lshl_add_u32 v14, v15, 7, v14
    v_and_b32 v15, 3, v1
    v_lshl_add_u32 v14, v15, 3, v14
    v_add_u32 v14, {G_X}, v14
    s_lshl_b32 s20, s34, 6
    s_lshl_b32 s21, s22, 4
    s_add_u32 s20, s20, s21
    s_lshl_b32 s20, s20, 10
    s_lshl_b32 s21, s35, 7
    s_add_u32 s20, s20, s21
    v_lshlrev_b32 v15, 10, v3
    v_lshl_add_u32 v15, v4, 4, v15
    v_add_u32 v15, s20, v15
    """)
    AHEAD = Opt.g_ahead
    assert 2 <= AHEAD <= 8
    extra2 = {1: r2ld, 3: raddr3, 6: r2a, 7: r2b, 8: r2c, 12: raddr2}
    for ks in range(AHEAD):
        vm.emit(hloads(ks))
    for ks in range(13):
        vm.wait(f"h{ks}")
        if ks == 0:
            stamp(k, 6)
        vm.emit(front(mf2(ks), [], [], hloads(ks + AHEAD) if ks + AHEAD < 14 else [], extra2.get(ks, [])))
    vm.wait("h13")
    last = mf2(13, order=(1, 2, 3, 0))
    wr = []
    for n, u in enumerate((1, 2, 3)):
        for dt in (range(4) if n % 2 == 0 else range(3, -1, -1)):
            a = ACC + 16 * u + 4 * dt
            wr.append(f"ds_write_b128 v{8+u}, v[{a}:{a+3}] offset:{1024*dt}")
    vm.emit(interleave(last, wr, start=8, per=1.0))
    stamp(k, 7)
    k("s_waitcnt lgkmcnt(0)")
    k("s_barrier")
    for dt in range(4):
        k(f"ds_read_b64_tr_b16 v[{96+2*dt}:{97+2*dt}], v14 offset:{4096*(dt>>1) + 512*(dt&1)}")
    for u in range(1, 4):
        for dt in range(4):
            a = ACC + 16 * u + 4 * dt
            k(f"ds_read_b128 v[{a}:{a+3}], v{4+u} offset:{1024*dt}")
        if u == 2:
            k("s_waitcnt lgkmcnt(8)")
            unpack8(k, 104, 96)
            unpack8(k, 112, 100)
    for u in range(1, 4):
        k(f"s_waitcnt lgkmcnt({4 * (3 - u)})")
        for p in range(8):
            k(f"v_pk_add_f32 v[{ACC+2*p}:{ACC+2*p+1}], v[{ACC+2*p}:{ACC+2*p+1}], v[{ACC+16*u+2*p}:{ACC+16*u+2*p+1}]")
    for hi in range(2):
        for p in range(4 * hi, 4 * hi + 4):
            k(f"v_pk_fma_f32 v[{ACC+2*p}:{ACC+2*p+1}], v[{ACC+2*p}:{ACC+2*p+1}], v[{GB+2*p}:{GB+2*p+1}], v[{104+2*p}:{105+2*p}]")
        for p in range(4 * hi, 4 * hi + 4):
            k(f"v_cvt_pk_bf16_f32 v{120+p}, v{ACC+2*p}, v{ACC+2*p+1}")
        k(f"global_store_dwordx4 v15, v[{120+4*hi}:{123+4*hi}], s[6:7] offset:{64*hi}")
    stamp_out(k, Opt.gslot, "s[4:5]", 16, 4, last=8)
    k("L_g_end:")
    k("s_endpgm")
    k("L_g_retry:")
    k("s_mov_b32 s56, 0")
    k("L_g_retry2:")
    for x in gather:
        k(x[0])
    k("s_add_u32 s56, s56, 1")
    k(f"s_cmp_gt_u32 s56, {SPIN_MAX}")
    k("s_waitcnt vmcnt(0)")
    k("s_cbranch_scc1 L_g_ok")
    for x in check:
        k(x)
    k("s_nop 0")
    k("s_cbranch_vccnz L_g_retry2")
    k("s_branch L_g_ok")
    return k


def build(stampflag=False):
    Opt.stamp = stampflag
    ref = open(f"cdna_kernels/{NAME}.s.ref").read().split("\n")
    head = [ln for ln in ref[:ref.index(next(l for l in ref if l.startswith("; Override")))]]
    ks = [(gen_f1(), 256, 512, F1_LDS), (gen_f2(), 480, 256, F2_LDS), (gen_g(), 256, 256, G_LDS)]
    out = "\n".join(head) + "\n"
    for k, g, b, lds in ks:
        out += f"; @launch kernel={k.name} grid=({g},1,1) block=({b},1,1) lds={lds}\n"
    out += '.amdgcn_target "amdgcn-amd-amdhsa--gfx950"\n.text\n'
    kds = ""
    for k, g, b, lds in ks:
        t, kd = k.text()
        out += t
        kds += ".p2align 6\n" + kd
        print(f"{k.name}: vgpr {k.maxv + 1} agpr {k.maxa + 1} sgpr {k.maxs + 1} nops {k.nops} lds {lds}", file=sys.stderr)
    out += "L_code_end:\n"
    out += '.section .rodata,"a"\n' + kds
    return out


if __name__ == "__main__":
    st = "--stamp" in sys.argv
    for a in sys.argv[1:]:
        if a.startswith("--") and "=" in a:
            n, v = a[2:].split("=")
            assert hasattr(Opt, n), n
            setattr(Opt, n, int(v))
    dst = [a for a in sys.argv[1:] if not a.startswith("--")]
    path = dst[0] if dst else f"cdna_kernels/{NAME}.s"
    open(path, "w").write(build(st))
```

```python
import sys, os, math, struct
sys.path.insert(0, os.path.dirname(os.path.abspath(__file__)))
from asmlib import Kernel, Ins, interleave

NAME = "adaLN_cond__ssm_conv_s4__glu_gated_bilinear__prompt"

KA_U, KA_ARE, KA_AIM, KA_BRE, KA_BIM, KA_CRE, KA_CIM, KA_LDT, KA_DSK = 0, 8, 16, 24, 32, 40, 48, 56, 64
KA_WG, KA_WU, KA_WD, KA_C, KA_WMOD, KA_OUT, KA_DBG, KA_WS = 80, 88, 96, 104, 112, 120, 128, 136

WS_XT = 0x000000
WS_N1T = 0x200000
WS_X1T = 0x400000
WS_W1P = 0x600000
WS_MODP = 0x980000
WS_GB = 0x98C000
WS_SYN = 0x98E000
WS_STP = 0x9A0000
WS_CNT = 0x9C0000
WS_W1A = 0x9C8000
WS_W2P = 0xA00000
WS_HH = 0xC00000
WS_STAMP = 0x1400000
SPIN_MAX = 400000

LOG2E = 1.4426950408889634


def fbits(x):
    return "0x%08x" % struct.unpack("<I", struct.pack("<f", x))[0]


class Opt:
    stamp = False
    gslot = 1
    nt = "nt"
    f_cprio = 0
    f_aprio = 2
    f_swap = 1
    f_shard = 1
    f_wpos = 7
    nt1 = "nt"
    f_three = 0
    f_prio = 1
    f_wsc = "sc1"
    f_reread = 1
    touch = 0
    pf = 0
    g_rot = 0
    g_r1 = 0
    g_tstart = 11
    g_trickle = 4
    g_map = 0
    g_steps = 0
    g_fine = 6
    g_la = 5
    g_bp = 2
    g_bp0 = 8
    g_nbp0 = 3
    g_pbar = 1
    g_pre = 17
    g_pre2 = 2
    g_rate = 7
    g_trate = 4
    g_gat = 7
    g_w2epi = 1
    g_w2drain = 16
    g_ahead = 3


def stamp(k, n, step=False):
    if Opt.g_steps and k.name == "g_kernel" and n and not step:
        return
    if Opt.stamp:
        k(f"s_memrealtime s[{64 + 2 * n}:{65 + 2 * n}]")


def stamp_out(k, slot, ws, nst, vt, last=None):
    if not Opt.stamp:
        return
    k("s_waitcnt vmcnt(0)")
    stamp(k, nst - 1 if last is None else last)
    k("s_waitcnt lgkmcnt(0)")
    k(f"s_mov_b64 exec, -1")
    k(f"s_lshl_b32 s97, s2, 6")
    k(f"s_add_u32 s97, s97, {WS_STAMP + slot * 0x10000}")
    k(f"v_cmp_eq_u32 vcc, 0, v0")
    k(f"s_and_saveexec_b64 s[98:99], vcc")
    k(f"s_cbranch_execz L_{k.name}_st{slot}_{vt}")
    k(f"v_mov_b32 v{vt}, s97")
    for i in range(nst):
        k(f"v_mov_b32 v{vt + 1}, s{64 + 2 * i}")
        k(f"global_store_dword v{vt}, v{vt + 1}, {ws} offset:{4 * i}")
    k(f"L_{k.name}_st{slot}_{vt}:")


def wave_allreduce(k, v, t):
    for r in (8, 4, 2, 1):
        k(f"v_add_f32_dpp v{v}, v{v}, v{v} row_ror:{r} row_mask:0xf bank_mask:0xf")
    k(f"v_mov_b32 v{t}, v{v}")
    k(f"v_permlane16_swap_b32 v{v}, v{t}")
    k(f"v_add_f32 v{v}, v{v}, v{t}")
    k(f"v_mov_b32 v{t}, v{v}")
    k(f"v_permlane32_swap_b32 v{v}, v{t}")
    k(f"v_add_f32 v{v}, v{v}, v{t}")


def unpack8(k, dst, src):
    for i in range(4):
        k(f"v_lshlrev_b32 v{dst + 2 * i}, 16, v{src + i}")
        k(f"v_and_b32 v{dst + 2 * i + 1}, 0xffff0000, v{src + i}")


def code_prefetch(k, va, vd, end_label):
    k("s_getpc_b64 s[58:59]")
    k(f"L_{k.name}_pc:")
    k(f"""
    s_sub_u32 s58, s58, L_{k.name}_pc-{k.name}
    s_subb_u32 s59, s59, 0
    s_bfe_u32 s57, s2, 0x50003
    s_lshl_b32 s57, s57, 10
    v_bfe_u32 v{va}, v0, 5, 3
    v_lshl_add_u32 v{va}, v{va}, 7, s57
    v_min_u32 v{va}, {end_label}-{k.name}-4, v{va}
    global_load_dword v{vd}, v{va}, s[58:59]
    """)


class VM:
    def __init__(self, k):
        self.k = k
        self.tags = []

    def emit(self, items):
        for it in items:
            if isinstance(it, tuple):
                self.tags.append(it[1])
                self.k(it[0])
            elif callable(it):
                it()
            else:
                self.k(it)

    def count(self, tag):
        last = max(i for i, t in enumerate(self.tags) if t == tag)
        return min(63, len(self.tags) - 1 - last)

    def wait(self, tag, extra=""):
        self.k(f"s_waitcnt vmcnt({self.count(tag)}){extra}")


def merge(a, b):
    out, i, j = [], 0, 0
    while i < len(a) or j < len(b):
        if j >= len(b) or (i < len(a) and i * len(b) <= j * len(a)):
            out.append(a[i]); i += 1
        else:
            out.append(b[j]); j += 1
    return out


def front(main, rds, late, mem, other):
    n = len(main)
    slots = [[] for _ in range(n)]
    rate = max(1, -(-len(rds) // max(1, n - 4)))
    for i, r in enumerate(rds):
        slots[min(n - 1, i // rate)].append(r)
    nr = -(-len(rds) // rate)
    for i, x in enumerate(late):
        slots[min(n - 1, nr + i)].append(x)
    nv = sum(isinstance(x, tuple) for x in mem)
    kv, held, prev = 0, [], 0
    for x in mem:
        if isinstance(x, tuple):
            g = min(n - 1, int((kv + 0.5) * n / nv))
            for j, h in enumerate(held):
                prev = max(prev, g - len(held) + j)
                slots[prev].append(h)
            held = []
            prev = max(prev, g)
            slots[prev].append(x)
            kv += 1
        else:
            held.append(x)
    slots[n - 1] += held
    cap = (sum(len(x) for x in slots) + len(other)) / n
    i, acc = 0, 0.0
    out = []
    for j in range(n):
        out.append(main[j])
        out += slots[j]
        acc += cap - len(slots[j])
        while i < len(other) and acc >= 0.5:
            out.append(other[i]); i += 1; acc -= 1
    return out + other[i:]


def lines(t):
    return [x.strip() for x in t.strip().split("\n") if x.strip()]


A_ROW = 1088
A_X = 0
A_N = 8 * A_ROW
A_WM = 16 * A_ROW
A_SIL = A_WM + 16384
A_PART = A_SIL + 256
A_S2 = A_PART + 1024
A_SB = A_S2 + 512
A_S1 = 2080
A_W1 = A_SB + 256
A_W2 = A_W1 + 8 * A_S1
A_END = A_W2 + 8192

C_ROW = 272
C_TS = 14592
C_RED = 0
C_KR = 4096
C_BASE = 8320
C_HS = 4 * C_TS
C_HSZ = 4608
C_KC = C_HS + 512
C_END = C_HS + 2 * C_HSZ
F_LDS = max(A_END, C_END)
LAMBDA = [0, 1, 2, 3, 256, 258, 260, 262, 512, 516, 4, 5, 768, 772, 6, 7]


def ci_tail(k, dst, j32, pk, half, t):
    k(f"""
    v_subrev_u32_sdwa v{t}, s36, v{pk} dst_sel:DWORD dst_unused:UNUSED_PAD src0_sel:DWORD src1_sel:WORD_{half}
    v_med3_i32 v{dst}, v{j32}, s37, v{t}
    v_lshrrev_b32 v{t}, 5, v{dst}
    v_add_lshl_u32 v{dst}, v{dst}, v{t}, 2
    """)


class Cx:
    def __init__(self, r, form):
        self.r, self.form = r, form
        self.re, self.im = (r, r + 1) if form == "N" else (r + 1, r)
        self.p = f"v[{r}:{r+1}]"


def cmul(d, a, b):
    f = a.form + b.form
    out = Cx(d, "S" if a.form == b.form else "N")
    n1 = {"NN": " neg_hi:[1,0]", "NS": " neg_lo:[1,0]"}.get(f, "")
    n2 = {"SS": " neg_hi:[1,0,0]", "SN": " neg_lo:[1,0,0]"}.get(f, "")
    return out, [f"v_pk_mul_f32 {out.p}, {a.p}, {b.p} op_sel:[1,0] op_sel_hi:[1,1]{n1}",
                 f"v_pk_fma_f32 {out.p}, {b.p}, {a.p}, {out.p} op_sel:[1,0,0] op_sel_hi:[0,0,1]{n2}"]


def schedule(ops, gap=3):
    ins = [Ins(t) for t in ops]
    deps, last = [], {}
    for i, c in enumerate(ins):
        deps.append({last[r] for r in c.r if r in last})
        for r in c.w:
            last[r] = i
    height = [0] * len(ins)
    for i in range(len(ins) - 1, -1, -1):
        for d in deps[i]:
            height[d] = max(height[d], height[i] + 1)
    at, out = {}, []
    while len(out) < len(ins):
        ready = [i for i in range(len(ins)) if i not in at and all(d in at for d in deps[i])]
        now = len(out)
        ok = [i for i in ready if all(now - at[d] >= gap for d in deps[i])]
        mem = [i for i in ok if ins[i].ds and (not out or not ins[out[-1]].ds)]
        if mem:
            i = mem[0]
        elif ok:
            cv = [i for i in ok if height[i] == 1]
            i = cv[0] if len(cv) >= 2 else max(ok, key=lambda i: (height[i], -i))
        else:
            i = min(ready, key=lambda i: max(at[d] for d in deps[i]))
        at[i] = now
        out.append(i)
    return [ops[i] for i in out]


def spin(k, name, vaddr, vdst, base, expect, first_loaded=False):
    k("s_mov_b32 s3, 0")
    if first_loaded:
        k(f"s_branch L_{name}_t")
    k(f"""
    L_{name}:
    global_load_dword v{vdst}, v{vaddr}, {base} sc1
    s_add_u32 s3, s3, 1
    s_cmp_gt_u32 s3, {SPIN_MAX}
    s_cbranch_scc1 L_{name}_x
    L_{name}_t:
    s_waitcnt vmcnt(0)
    v_cmp_ne_u32 vcc, {expect}, v{vdst}
    s_cbranch_vccnz L_{name}
    L_{name}_x:
    """)


def round_bf16(k, v):
    k(f"v_cvt_pk_bf16_f32 v{v}, v{v}, v{v}")
    k(f"v_lshlrev_b32 v{v}, 16, v{v}")


def tile_index(x, i, kb, fb, off, t):
    return f"""s_and_b32 s{x}, s2, 7
    s_bfe_u32 s{i}, s2, 0x50003
    s_min_u32 s{i}, s{i}, 27
    s_mul_i32 s{kb}, s{i}, 37
    s_lshr_b32 s{kb}, s{kb}, 8
    s_mul_i32 s{fb}, s{kb}, 7
    s_sub_u32 s{fb}, s{i}, s{fb}
    s_and_b32 s{off}, s{x}, 1
    s_lshl_b32 s{off}, s{off}, 2
    s_add_u32 s{kb}, s{kb}, s{off}
    s_lshr_b32 s{off}, s{x}, 1
    s_mul_i32 s{off}, s{off}, 7
    s_add_u32 s{fb}, s{fb}, s{off}
    s_mul_i32 s{off}, s{kb}, {64 * 3584}
    s_lshl_b32 s{t}, s{fb}, 7
    s_add_u32 s{off}, s{off}, s{t}"""


def gen_f_aux(k):
    k(f"""
    s_setprio {Opt.f_aprio}
    v_lshlrev_b32 v3, 4, v1
    v_readfirstlane_b32 s22, v2
    s_lshl_b32 s23, s2, 13
    v_lshl_add_u32 v4, v2, 11, v3
    v_add_u32 v4, s23, v4
    s_min_u32 s24, s2, 191
    s_mul_i32 s25, s24, 1366
    s_lshr_b32 s25, s25, 16
    s_mul_i32 s26, s25, 48
    s_sub_u32 s24, s24, s26
    s_lshl_b32 s26, s25, 7
    s_lshl_b32 s27, s22, 5
    s_add_u32 s26, s26, s27
    v_and_b32 v5, 31, v1
    v_add_u32 v5, s26, v5
    v_lshlrev_b32 v5, 1, v5
    v_lshrrev_b32 v6, 3, v1
    v_add_u32 v6, s26, v6
    v_mul_u32_u24 v6, 6144, v6
    v_and_b32 v7, 7, v1
    v_lshl_add_u32 v6, v7, 4, v6
    s_lshl_b32 s27, s24, 7
    v_add_u32 v6, s27, v6
    v_add_u32 v7, {8 * 6144 - 1024}, v6
    v_add_u32 v8, {2 * (8 * 6144 - 1024)}, v6
    v_add_u32 v9, {3 * (8 * 6144 - 1024)}, v6
    s_lshl_b32 s28, s22, 12
    s_add_u32 s28, s28, {A_WM}
    s_mov_b32 m0, s28
    s_waitcnt lgkmcnt(0)
    global_load_dwordx4 v[16:19], v4, s[52:53] {Opt.nt}
    global_load_dwordx4 v[20:23], v4, s[52:53] offset:1024 {Opt.nt}
    global_load_ushort v24, v5, s[60:61]
    s_cmp_ge_u32 s2, 192
    s_cbranch_scc1 L_fa_nomod
    global_load_lds_dwordx4 v6, s[62:63] {Opt.nt}
    global_load_lds_dwordx4 v7, s[62:63] offset:1024 {Opt.nt}
    global_load_lds_dwordx4 v8, s[62:63] offset:2048 {Opt.nt}
    global_load_lds_dwordx4 v9, s[62:63] offset:3072 {Opt.nt}
    s_branch L_fa_ld
    L_fa_nomod:
    s_lshl_b32 s27, s22, 8
    s_or_b32 s27, s27, s2
    s_cmp_lg_u32 s27, 255
    s_cbranch_scc1 L_fa_noinit
    v_and_b32 v10, 15, v1
    v_lshlrev_b32 v10, 8, v10
    v_add_u32 v10, {WS_SYN}, v10
    v_mov_b32 v11, 0
    v_mov_b32 v12, 1
    global_store_dword v10, v11, s[20:21] sc1
    s_waitcnt vmcnt(0)
    global_store_dword v11, v12, s[50:51] sc1
    s_branch L_fa_ld
    L_fa_noinit:
    s_waitcnt vmcnt(0)
    L_fa_ld:
    """)
    k(f"""
    {tile_index(29, 30, 31, 32, 33, 34)}
    v_lshrrev_b32 v13, 3, v0
    v_and_b32 v14, 7, v0
    v_mul_u32_u24 v5, 3584, v13
    v_lshl_add_u32 v5, v14, 4, v5
    v_add_u32 v5, s33, v5
    v_add_u32 v6, {32 * 3584}, v5
    s_lshl_b32 s33, s30, 16
    s_lshl_b32 s34, s29, 7
    s_add_u32 s33, s33, s34
    v_lshrrev_b32 v7, 3, v0
    v_lshlrev_b32 v7, 10, v7
    v_and_b32 v8, 7, v0
    v_lshl_add_u32 v7, v8, 4, v7
    v_add_u32 v7, s33, v7
    v_add_u32 v8, 0x8000, v7
    s_lshl_b32 s35, s22, 10
    s_add_u32 s35, s35, {A_W2}
    v_mul_u32_u24 v9, {2 * A_ROW}, v2
    v_add_u32 v9, v9, v3
    v_lshrrev_b32 v15, 4, v1
    """)
    wl = f"""
    s_mov_b32 m0, s35
    global_load_dwordx4 v[64:67], v5, s[44:45] {Opt.nt1}
    global_load_dwordx4 v[68:71], v5, s[46:47] {Opt.nt1}
    global_load_dwordx4 v[72:75], v6, s[44:45] {Opt.nt1}
    global_load_dwordx4 v[76:79], v6, s[46:47] {Opt.nt1}
    global_load_lds_dwordx4 v7, s[54:55] {Opt.nt}
    s_add_u32 m0, s35, 4096
    global_load_lds_dwordx4 v8, s[54:55] {Opt.nt}
    """
    if Opt.f_wpos == 0:
        k(wl)
    k(f"s_waitcnt vmcnt({10 if Opt.f_wpos == 0 else 4})")
    stamp(k, 1)
    if Opt.f_wpos == 1:
        k(wl)
    k(f"""
    ds_write_b128 v9, v[16:19] offset:{A_X}
    ds_write_b128 v9, v[20:23] offset:{A_X + A_ROW}
    v_lshlrev_b32 v24, 16, v24
    v_mul_f32 v25, {fbits(-LOG2E)}, v24
    v_exp_f32 v25, v25
    """)
    unpack8(k, 32, 16)
    k("v_add_f32 v25, 1.0, v25")
    k("v_rcp_f32 v25, v25")
    unpack8(k, 40, 20)
    k(f"""
    v_mul_f32 v25, v24, v25
    v_cvt_pk_bf16_f32 v25, v25, v25
    v_and_b32 v26, 31, v1
    v_lshlrev_b32 v26, 1, v26
    v_lshl_add_u32 v26, v2, 6, v26
    ds_write_b16 v26, v25 offset:{A_SIL}
    """)

    def reduce2(a, b, t):
        for r in (8, 4, 2, 1):
            k(f"v_add_f32_dpp v{a}, v{a}, v{a} row_ror:{r} row_mask:0xf bank_mask:0xf")
            k(f"v_add_f32_dpp v{b}, v{b}, v{b} row_ror:{r} row_mask:0xf bank_mask:0xf")
        for sw in (16, 32):
            k(f"v_mov_b32 v{t}, v{a}")
            k(f"v_mov_b32 v{t+1}, v{b}")
            k(f"v_permlane{sw}_swap_b32 v{a}, v{t}")
            k(f"v_permlane{sw}_swap_b32 v{b}, v{t+1}")
            k(f"v_add_f32 v{a}, v{a}, v{t}")
            k(f"v_add_f32 v{b}, v{b}, v{t+1}")

    for r, b in ((48, 32), (52, 40)):
        k(f"v_pk_add_f32 v[{r}:{r+1}], v[{b}:{b+1}], v[{b+2}:{b+3}]")
        k(f"v_pk_add_f32 v[{r+2}:{r+3}], v[{b+4}:{b+5}], v[{b+6}:{b+7}]")
    for r in (48, 52):
        k(f"v_pk_add_f32 v[{r}:{r+1}], v[{r}:{r+1}], v[{r+2}:{r+3}]")
    for r in (48, 52):
        k(f"v_add_f32 v{r}, v{r}, v{r+1}")
    reduce2(48, 52, 56)
    for r in (48, 52):
        k(f"v_mul_f32 v{r}, {fbits(-1.0 / 512)}, v{r}")
    for r, b in ((48, 32), (52, 40)):
        for q in range(4):
            k(f"v_pk_add_f32 v[{b+2*q}:{b+2*q+1}], v[{b+2*q}:{b+2*q+1}], v[{r}:{r+1}] op_sel_hi:[1,0]")
    for q in range(4):
        for r, b in ((48, 32), (52, 40)):
            if q == 0:
                k(f"v_pk_mul_f32 v[{r}:{r+1}], v[{b}:{b+1}], v[{b}:{b+1}]")
            else:
                k(f"v_pk_fma_f32 v[{r}:{r+1}], v[{b+2*q}:{b+2*q+1}], v[{b+2*q}:{b+2*q+1}], v[{r}:{r+1}]")
    for r in (48, 52):
        k(f"v_add_f32 v{r}, v{r}, v{r+1}")
    reduce2(48, 52, 56)
    k(f"v_mov_b32 v56, {fbits(1e-5)}")
    for r in (48, 52):
        k(f"v_fmamk_f32 v{r}, v{r}, {fbits(1.0 / 512)}, v56")
    for r in (48, 52):
        k(f"v_rsq_f32 v{r}, v{r}")
    k(f"""
    v_lshrrev_b32 v26, 2, v1
    v_lshlrev_b32 v26, 7, v26
    v_and_b32 v27, 3, v1
    v_lshl_add_u32 v26, v27, 3, v26
    v_add_u32 v26, s28, v26
    v_lshlrev_b32 v27, 3, v15
    v_lshl_add_u32 v27, v2, 6, v27
    """)
    for r, b in ((48, 32), (52, 40)):
        for q in range(4):
            k(f"v_pk_mul_f32 v[{b+2*q}:{b+2*q+1}], v[{b+2*q}:{b+2*q+1}], v[{r}:{r+1}] op_sel_hi:[1,0]")
    for o, b in ((16, 32), (20, 40)):
        for q in range(4):
            k(f"v_cvt_pk_bf16_f32 v{o+q}, v{b+2*q}, v{b+2*q+1}")
    k(f"""
    ds_write_b128 v9, v[16:19] offset:{A_N}
    ds_write_b128 v9, v[20:23] offset:{A_N + A_ROW}
    v_bfe_u32 v10, v1, 2, 2
    v_mul_u32_u24 v10, {A_ROW}, v10
    v_lshrrev_b32 v11, 4, v0
    v_lshl_add_u32 v10, v11, 5, v10
    v_and_b32 v11, 3, v1
    v_lshl_add_u32 v10, v11, 3, v10
    v_lshlrev_b32 v11, 4, v0
    v_add_u32 v11, s23, v11
    v_add_u32 v12, {WS_N1T + 4096}, v11
    v_add_u32 v11, {WS_XT + 4096}, v11
    s_waitcnt lgkmcnt(0)
    s_barrier
    """)
    for n, (reg, off) in enumerate(((16, A_N), (20, A_N + 512), (80, A_X), (84, A_X + 512))):
        k(f"ds_read_b64_tr_b16 v[{reg}:{reg+1}], v10 offset:{off}")
        k(f"ds_read_b64_tr_b16 v[{reg+2}:{reg+3}], v10 offset:{off + 4 * A_ROW}")
    k(f"""
    ds_read_b64 v[28:29], v27 offset:{A_SIL}
    ds_read_b64 v[30:31], v27 offset:{A_SIL + 32}
    v_cmp_eq_u32 s[36:37], 1, v15
    v_cmp_eq_u32 s[38:39], 2, v15
    v_cmp_eq_u32 s[40:41], 3, v15
    v_lshlrev_b32 v25, 2, v0
    s_waitcnt lgkmcnt(8)
    global_store_dwordx4 v12, v[16:19], s[20:21] offset:-4096 sc1
    s_waitcnt lgkmcnt(6)
    global_store_dwordx4 v12, v[20:23], s[20:21] sc1
    s_waitcnt lgkmcnt(4)
    global_store_dwordx4 v11, v[80:83], s[20:21] offset:-4096 sc1
    s_waitcnt lgkmcnt(2)
    global_store_dwordx4 v11, v[84:87], s[20:21] sc1
    s_waitcnt vmcnt({10 if Opt.f_wpos < 2 else 4})
    """)
    stamp(k, 2)
    for ct in range(4):
        for j in range(2):
            k(f"ds_read_b64_tr_b16 v[{32+4*ct+2*j}:{33+4*ct+2*j}], v26 offset:{2048*j + 32*ct}")
    for ct in range(4):
        k(f"s_waitcnt lgkmcnt({6 - 2 * ct})")
        k(f"v_mfma_f32_16x16x32_bf16 v[{48+4*ct}:{51+4*ct}], v[28:31], v[{32+4*ct}:{35+4*ct}], 0")
    k(f"""
    s_mul_i32 s33, s25, 12288
    s_lshl_b32 s34, s24, 8
    s_add_u32 s33, s33, s34
    s_add_u32 s33, s33, {WS_MODP}
    v_mov_b32 v26, 0
    v_cndmask_b32 v48, v48, v52, s[36:37]
    v_cndmask_b32 v48, v48, v56, s[38:39]
    v_cndmask_b32 v48, v48, v60, s[40:41]
    ds_write_b32 v25, v48 offset:{A_PART}
    s_waitcnt lgkmcnt(0)
    s_barrier
    s_cmp_lg_u32 s22, 0
    s_cbranch_scc1 L_fa_pub
    ds_read2st64_b32 v[40:41], v25 offset0:{A_PART // 256} offset1:{A_PART // 256 + 1}
    ds_read2st64_b32 v[42:43], v25 offset0:{A_PART // 256 + 2} offset1:{A_PART // 256 + 3}
    global_load_dword v27, v26, s[50:51] sc1
    v_add_u32 v25, s33, v25
    s_cmp_ge_u32 s2, 192
    s_cbranch_scc1 L_fa_pub
    s_waitcnt lgkmcnt(0)
    v_add_f32 v40, v40, v41
    v_add_f32 v42, v42, v43
    v_add_f32 v40, v40, v42
    global_store_dword v25, v40, s[20:21] sc1
    L_fa_pub:
    """)
    assert A_PART % 256 == 0
    stamp(k, 3)
    if Opt.f_wpos in (2, 3):
        k(wl)
    k(f"""
    s_waitcnt vmcnt({6 if Opt.f_wpos == 3 else 0}) lgkmcnt(0)
    s_barrier
    """)
    stamp(k, 4)
    k("s_cmp_lg_u32 s22, 0")
    k("s_cbranch_scc1 L_fa_arrived")
    k("v_cmp_eq_u32 vcc, 1, v27")
    k("s_cbranch_vccnz L_fa_rdy_x")
    spin(k, "fa_rdy", 26, 27, "s[50:51]", 1)
    LAST = "s_mov_b64 exec, 0xff\nglobal_atomic_add v26, v27, s[20:21] sc1\ns_mov_b64 exec, -1"
    if Opt.f_three:
        LAST = """v_mov_b32 v29, 128
        s_mov_b64 exec, 1
        global_atomic_add v28, v29, v27, s[50:51] sc0 sc1
        s_mov_b64 exec, -1
        v_mov_b32 v27, 8
        s_waitcnt vmcnt(0)
        v_readfirstlane_b32 s33, v28
        s_cmp_lg_u32 s33, 7
        s_cbranch_scc1 L_fa_arrived
        s_mov_b64 exec, 0xff
        global_store_dword v26, v27, s[20:21] sc1
        s_mov_b64 exec, -1"""
    k(f"""
    s_bfe_u32 s33, s2, {0x30000 if Opt.f_shard else 0x30003}
    s_lshl_b32 s33, s33, 8
    s_add_u32 s33, s33, {WS_SYN}
    v_mov_b32 v26, s33
    v_mov_b32 v27, 1
    s_mov_b64 exec, 1
    global_atomic_add v28, v26, v27, s[20:21] sc0 sc1
    s_mov_b64 exec, -1
    v_lshlrev_b32 v26, 8, v1
    v_add_u32 v26, {WS_SYN + 2048}, v26
    s_waitcnt vmcnt(0)
    v_readfirstlane_b32 s33, v28
    s_cmp_lg_u32 s33, 31
    s_cbranch_scc1 L_fa_arrived
    {LAST}
    L_fa_arrived:
    s_setprio {Opt.f_prio}
    """)
    stamp(k, 7)
    if Opt.f_wpos == 4:
        k("s_barrier")
    if Opt.f_wpos == 4:
        k(wl)
    k(f"""
    v_mul_u32_u24 v11, {A_S1}, v14
    v_lshl_add_u32 v11, v13, 5, v11
    s_mul_i32 s33, s22, {2 * A_S1}
    v_lshlrev_b32 v12, 3, v1
    v_add_u32 v12, s33, v12
    v_bfe_u32 v10, v1, 2, 2
    v_lshlrev_b32 v10, 7, v10
    v_and_b32 v114, 3, v1
    v_lshl_add_u32 v10, v114, 4, v10
    v_and_b32 v114, 1, v15
    v_lshl_add_u32 v10, v114, 3, v10
    v_lshrrev_b32 v114, 1, v15
    v_lshl_add_u32 v10, v114, 6, v10
    v_lshl_add_u32 v10, v2, 11, v10
    s_lshl_b32 s33, s32, 2
    s_add_u32 s33, s33, s22
    s_lshl_b32 s33, s33, 1
    s_mul_i32 s34, s33, 4682
    s_lshr_b32 s34, s34, 16
    s_mul_i32 s34, s34, {16 * 14 - 14}
    s_add_u32 s34, s34, s33
    s_mul_i32 s42, s31, 28
    s_add_u32 s34, s34, s42
    s_lshl_b32 s34, s34, 10
    s_add_u32 s34, s34, {WS_W1P}
    v_add_u32 v14, s34, v3
    s_mul_i32 s34, s29, 224
    s_lshl_b32 s42, s30, 3
    s_add_u32 s34, s34, s42
    s_lshl_b32 s42, s22, 1
    s_add_u32 s34, s34, s42
    s_lshl_b32 s34, s34, 10
    s_add_u32 s34, s34, {WS_W2P}
    v_add_u32 v112, s34, v3
    s_lshl_b32 s33, s33, 10
    s_lshr_b32 s42, s31, 1
    s_lshl_b32 s42, s42, 8
    s_add_u32 s33, s33, s42
    s_and_b32 s42, s31, 1
    s_lshl_b32 s42, s42, 3
    s_add_u32 s33, s33, s42
    s_add_u32 s33, s33, {WS_W1A}
    v_add_u32 v113, s33, v3
    v_mov_b32 v116, 0x3f803f80
    v_mov_b32 v117, 0x3f803f80
    v_mov_b32 v118, 0x3f803f80
    v_mov_b32 v119, 0x3f803f80
    """)
    k(f"""
    v_and_b32 v25, 1, v2
    v_lshl_add_u32 v26, v25, 9, v1
    s_lshl_b32 s33, s31, 6
    s_add_u32 s33, s33, {3 * 512}
    s_and_b32 s34, s2, 1
    s_lshl_b32 s34, s34, 8
    s_add_u32 s42, s34, {5 * 512}
    s_cmp_ge_u32 s2, 224
    s_cselect_b32 s33, s42, s33
    s_cselect_b64 vcc, -1, 0
    v_cndmask_b32 v26, v26, v0, vcc
    v_add_u32 v26, s33, v26
    v_lshlrev_b32 v26, 2, v26
    v_add_u32 v26, {WS_MODP}, v26
    v_add_u32 v27, 12288, v26
    v_add_u32 v28, 24576, v26
    v_add_u32 v29, 36864, v26
    v_cvt_f32_u32 v30, v25
    """)
    def image():
        for p in range(2):
            g, u = 64 + 8 * p, 68 + 8 * p
            o = 32 + 8 * p
            for h in range(2):
                k(f"v_pk_mov_b32 v[{o+4*h}:{o+4*h+1}], v[{g+2*h}:{g+2*h+1}], v[{u+2*h}:{u+2*h+1}] op_sel:[0,0]")
                k(f"v_pk_mov_b32 v[{o+4*h+2}:{o+4*h+3}], v[{g+2*h}:{g+2*h+1}], v[{u+2*h}:{u+2*h+1}] op_sel:[1,1]")
            k(f"ds_write_b128 v11, v[{o}:{o+3}] offset:{A_W1 + 1024 * p}")
            k(f"ds_write_b128 v11, v[{o+4}:{o+7}] offset:{A_W1 + 1024 * p + 16}")

    if Opt.f_wpos < 6:
        k("s_waitcnt vmcnt(0)")
        image()
    k(f"""
    s_cmp_lg_u32 s22, 0
    s_cbranch_scc1 L_fa_go
    s_lshl_b32 s33, s29, 8
    s_add_u32 s33, s33, {WS_SYN + 2048}
    v_mov_b32 v114, s33
    """)
    spin(k, "fa_flag", 114, 115, "s[20:21]", 8)
    k(f"""
    L_fa_go:
    s_barrier
    """)
    stamp(k, 5)
    for i in range(4):
        k(f"global_load_dword v{48+i}, v{26+i}, s[20:21] sc1")
    k(f"""
    s_cmp_ge_u32 s2, 224
    s_cbranch_scc1 L_fa_gate
    v_lshlrev_b32 v26, 2, v1
    v_lshlrev_b32 v27, 1, v1
    v_lshlrev_b32 v28, 4, v15
    v_lshlrev_b32 v29, 3, v15
    v_add_u32 v24, {14 * 1024}, v14
    s_waitcnt vmcnt(0)
    """)
    if Opt.f_wpos >= 6:
        k(wl)
    k(f"""
    v_add_f32 v48, v48, v49
    v_add_f32 v50, v50, v51
    v_add_f32 v48, v48, v50
    """)
    round_bf16(k, 48)
    k(f"""
    v_add_f32 v48, v48, v30
    v_cvt_pk_bf16_f32 v48, v48, v48
    v_lshlrev_b32 v49, 16, v48
    s_bitcmp1_b32 s22, 0
    s_cbranch_scc1 L_fa_cb
    ds_write_b16 v27, v48 offset:{A_SB}
    s_branch L_fa_md
    L_fa_cb:
    ds_write_b32 v26, v49 offset:{A_S2}
    L_fa_md:
    """)
    if Opt.f_wpos >= 6:
        k("s_waitcnt vmcnt(2)")
        image()
    k("s_waitcnt vmcnt(0) lgkmcnt(0)")
    k("s_barrier")
    stamp(k, 8)
    for f in range(2):
        for j in range(2):
            k(f"ds_read_b64_tr_b16 v[{120+4*f+2*j}:{121+4*f+2*j}], v10 offset:{A_W2 + 1024*f + 512*j}")
    for n in range(4):
        for j in range(2):
            k(f"ds_read_b64_tr_b16 v[{64+4*n+2*j}:{65+4*n+2*j}], v12 offset:{A_W1 + A_S1*(n >> 1) + 1024*(n & 1) + 512*j}")
    k(f"""
    s_waitcnt lgkmcnt(8)
    global_store_dwordx4 v112, v[120:123], s[20:21] {Opt.f_wsc}
    global_store_dwordx4 v112, v[124:127], s[20:21] offset:1024 {Opt.f_wsc}
    """)
    for i in range(4):
        k(f"ds_read_b64 v[{48+2*i}:{49+2*i}], v29 offset:{A_SB + 32*i}")
        k(f"ds_read_b128 v[{80+4*i}:{83+4*i}], v28 offset:{A_S2 + 64*i}")
    for n in range(4):
        g, s = n >> 1, n & 1
        w = 64 + 4 * n
        if n == 0:
            k("s_waitcnt lgkmcnt(8)")
        unpack8(k, 32, w)
        if n == 0:
            k("s_waitcnt lgkmcnt(0)")
        bi, cs = 96 + 8 * g, 100 + 8 * g
        c = "0" if s == 0 else f"v[{bi}:{bi+3}]"
        k(f"v_mfma_f32_16x16x32_bf16 v[{bi}:{bi+3}], v[{48+4*s}:{51+4*s}], v[{w}:{w+3}], {c}")
        for q in range(4):
            k(f"v_pk_mul_f32 v[{32+2*q}:{33+2*q}], v[{32+2*q}:{33+2*q}], v[{80+8*s+2*q}:{81+8*s+2*q}]")
        o = 16 + 4 * s
        for q in range(4):
            k(f"v_cvt_pk_bf16_f32 v{o+q}, v{32+2*q}, v{33+2*q}")
        c = "0" if s == 0 else f"v[{cs}:{cs+3}]"
        k(f"v_mfma_f32_16x16x32_bf16 v[{cs}:{cs+3}], v[116:119], v[{o}:{o+3}], {c}")
        k(f"global_store_dwordx4 v{24 if s else 14}, v[{o}:{o+3}], s[20:21] offset:{1024*g} {Opt.f_wsc}")
    for g in range(2):
        bi, cs, o = 96 + 8 * g, 100 + 8 * g, 32 + 2 * g
        k(f"""
        v_cvt_pk_bf16_f32 v40, v{bi}, v{cs}
        v_lshlrev_b32 v{o+1}, 16, v40
        v_and_b32 v{o}, 0xffff0000, v40
        v_sub_f32 v{bi}, v{bi}, v{o+1}
        v_sub_f32 v{cs}, v{cs}, v{o}
        v_cvt_pk_bf16_f32 v{o+1}, v{o+1}, v{bi}
        v_cvt_pk_bf16_f32 v{o}, v{o}, v{cs}
        """)
    k(f"""
    s_mov_b64 exec, 0xffff
    global_store_dwordx2 v113, v[32:33], s[20:21]
    global_store_dwordx2 v113, v[34:35], s[20:21] offset:1024
    s_mov_b64 exec, -1
    """)
    if Opt.f_reread:
        k(f"""
        v_bfe_u32 v24, v1, 4, 1
        v_mul_u32_u24 v24, {14 * 1024}, v24
        v_and_b32 v25, 15, v1
        v_lshl_add_u32 v24, v25, 7, v24
        v_sub_u32 v14, v14, v3
        v_add_u32 v24, v24, v14
        s_waitcnt vmcnt(0)
        global_load_dword v25, v24, s[20:21]
        """)
    k("s_branch L_fa_done")
    k(f"""
    L_fa_gate:
    s_cmp_ge_u32 s2, 226
    s_cbranch_scc1 L_fa_done
    v_add_u32 v26, s34, v0
    v_lshlrev_b32 v26, 2, v26
    v_add_u32 v26, {WS_GB}, v26
    s_waitcnt vmcnt(0)
    v_add_f32 v48, v48, v49
    v_add_f32 v50, v50, v51
    v_add_f32 v48, v48, v50
    """)
    round_bf16(k, 48)
    k("global_store_dword v26, v48, s[20:21]")
    k("L_fa_done:")
    stamp_out(k, 0, "s[20:21]", 9, 130, last=6)
    k("s_endpgm")


def gen_f_conv(k):
    stamp(k, 8)
    k(f"""
    v_readfirstlane_b32 s22, v2
    {tile_index(30, 31, 32, 33, 34, 35)}
    s_lshl_b32 s31, s31, 16
    s_lshl_b32 s30, s30, 7
    s_add_u32 s31, s31, s30
    s_cmp_eq_u32 s22, 1
    s_cselect_b32 s24, s46, s44
    s_cselect_b32 s25, s47, s45
    s_cmp_ge_u32 s22, 2
    s_cselect_b32 s24, s54, s24
    s_cselect_b32 s25, s55, s25
    s_cselect_b32 s34, s31, s34
    s_movk_i32 s35, 3584
    s_cselect_b32 s35, 1024, s35
    v_mul_u32_u24 v253, s35, v1
    v_add_u32 v253, s34, v253
    v_lshlrev_b32 v5, 4, v0
    v_mov_b32 v16, 0
    v_mov_b32 v17, 0
    v_mov_b32 v18, 0
    v_mov_b32 v19, 0
    v_min_u32 v20, 624, v5
    ds_write_b128 v20, v[16:19] offset:{C_HS}
    ds_write_b128 v20, v[16:19] offset:{C_HS + C_HSZ}
    v_and_b32 v14, 15, v1
    v_lshrrev_b32 v15, 4, v1
    s_lshr_b32 s39, s22, 1
    s_and_b32 s45, s22, 1
    s_movk_i32 s36, {0x4280 - 32}
    s_movk_i32 s37, {128 + 32}
    s_mul_i32 s40, s22, {C_TS}
    s_mul_i32 s41, s39, {2 * C_TS}
    s_mul_i32 s42, s39, {C_HSZ}
    """)
    k(f"""
    v_lshlrev_b32 v20, 3, v0
    v_sub_u32 v21, 2047, v20
    v_cvt_f32_u32 v24, v21
    """)
    for e in range(1, 9):
        k(f"v_subrev_f32 v{24 + e}, {fbits(float(e))}, v24")
    k("v_max_f32 v32, 0, v32")
    for q in range(5):
        k(f"v_cvt_pk_bf16_f32 v{34 + q}, v{24 + 2*q}, v{min(32, 25 + 2*q)}")
    for e in range(9):
        k(f"v_sub_u32 v{24 + e}, {2047 + 32 - e}, v20")
    for e in range(9):
        ci_tail(k, 232 + e, 24 + e, 34 + e // 2, e & 1, 22 + (e & 1))
    k(f"""
    s_lshl_b32 s46, s45, 7
    v_lshl_add_u32 v21, v14, 3, s46
    v_lshl_add_u32 v24, v15, 8, v21
    v_lshlrev_b32 v25, 1, v15
    v_mov_b32 v26, 0x104
    v_max_u32 v25, 2, v25
    v_cmp_eq_u32 vcc, 1, v15
    v_cndmask_b32 v25, v25, v26, vcc
    v_add_u32 v25, v25, v21
    v_add_u32 v26, 0x400, v24
    v_cvt_f32_u32 v27, v24
    v_cvt_f32_u32 v28, v25
    v_cvt_f32_u32 v29, v26
    v_cvt_pk_bf16_f32 v27, v27, v28
    v_cvt_pk_bf16_f32 v29, v29, v29
    v_add_u32 v24, 32, v24
    v_add_u32 v25, 32, v25
    v_add_u32 v26, 32, v26
    s_add_u32 s46, s42, {C_KC}
    """)
    ci_tail(k, 244, 24, 27, 0, 22)
    ci_tail(k, 245, 25, 27, 1, 23)
    ci_tail(k, 246, 26, 29, 0, 22)
    for r in range(244, 247):
        k(f"v_add_u32 v{r}, s46, v{r}")
    k(f"""
    v_mov_b32 v241, s46
    v_lshl_add_u32 v247, v1, 2, s40
    v_lshl_add_u32 v20, v15, 4, s41
    v_mul_u32_u24 v21, {C_ROW}, v14
    v_add_u32 v248, v20, v21
    s_mul_i32 s46, s45, {16 * C_ROW}
    v_add_u32 v250, s46, v248
    v_lshrrev_b32 v21, 2, v14
    v_cmp_eq_u32 vcc, 1, v14
    v_cndmask_b32 v21, v21, 4, vcc
    v_mul_u32_u24 v21, {C_ROW}, v21
    v_add_u32 v249, v20, v21
    """)
    k(f"""
    v_sub_u32 v56, 15, v14
    v_lshrrev_b32 v57, 1, v56
    v_lshl_add_u32 v57, v15, 2, v57
    v_lshlrev_b32 v57, 2, v57
    v_and_b32 v56, 1, v56
    v_mul_u32_u24 v56, {C_TS + 64}, v56
    s_lshl_b32 s47, s45, 8
    s_add_u32 s46, s41, s47
    s_add_u32 s46, s46, {C_KR}
    v_add3_u32 v60, v56, v57, s46
    v_add_u32 v61, 1024, v60
    v_add_u32 v62, 2048, v60
    v_add_u32 v63, 3072, v60
    s_add_u32 s46, s42, s47
    v_lshlrev_b32 v58, 5, v14
    v_lshl_add_u32 v58, v15, 4, v58
    v_add_u32 v58, s46, v58
    v_lshlrev_b32 v59, 6, v14
    v_lshl_add_u32 v59, v15, 4, v59
    v_add_u32 v59, s40, v59
    """)
    k(f"""
    v_lshrrev_b32 v20, 1, v0
    v_and_b32 v21, 1, v0
    v_lshlrev_b32 v242, 13, v20
    v_lshl_add_u32 v242, v21, 4, v242
    s_lshl_b32 s46, s23, 5
    v_add_u32 v242, s46, v242
    v_add_u32 v243, 0x100000, v242
    v_add_u32 v251, {WS_N1T}, v242
    v_add_u32 v252, {WS_N1T}, v243
    v_mul_u32_u24 v3, {C_HSZ}, v21
    v_lshl_add_u32 v3, v20, 4, v3
    v_mul_u32_u24 v4, {2 * C_TS}, v21
    v_lshl_add_u32 v4, v20, 5, v4
    v_cmp_eq_u32 s[48:49], 1, v21
    v_and_b32 v56, 3, v20
    v_mul_u32_u24 v56, 12288, v56
    v_lshl_add_u32 v56, v21, 2, v56
    s_lshl_b32 s46, s23, 3
    s_add_u32 s46, s46, {WS_MODP + 2048}
    v_add_u32 v56, s46, v56
    s_lshl_b32 s46, s23, 9
    s_add_u32 s46, s46, {WS_STP}
    s_lshl_b32 s43, s23, 7
    s_add_u32 s43, s43, {WS_CNT - 512}
    v_mov_b32 v6, s46
    v_mov_b32 v7, s43
    v_cmp_gt_u32 vcc, 32, v0
    v_cndmask_b32 v6, v7, v6, vcc
    v_add_u32 v6, v6, v5
    """)
    stamp(k, 9)
    k(f"""
    s_waitcnt lgkmcnt(0)
    s_lshl_b32 s46, s39, 4
    s_lshr_b32 s28, s28, s46
    s_lshl_b32 s28, s28, 16
    v_mov_b32 v20, {fbits(LOG2E)}
    v_mul_f32 v20, s28, v20
    v_exp_f32 v20, v20
    s_lshl_b32 s43, s29, 16
    s_and_b32 s44, s29, 0xffff0000
    v_mov_b32 v57, s43
    v_mov_b32 v53, s44
    v_cvt_pk_bf16_f32 v20, v20, v20
    v_cndmask_b32 v57, v57, v53, s[48:49]
    v_lshlrev_b32 v20, 16, v20
    v_mul_f32 v21, {fbits(LOG2E)}, v20
    v_mul_f32 v22, {fbits(1.0 / (2 * math.pi))}, v20
    s_waitcnt vmcnt(0)
    """)
    stamp(k, 1)
    ops = [f"v_lshlrev_b32 v{24 + i}, 16, v{8 + i}" for i in range(6)]
    ops += lines(f"""
    v_mul_f32 v30, v24, v21
    v_mul_f32 v31, v25, v22
    v_mul_f32 v32, v26, v20
    v_mul_f32 v33, v27, v20
    v_rndne_f32 v34, v31
    v_sub_f32 v35, v31, v34
    """)
    nxt = [64]

    def new():
        nxt[0] += 2
        return nxt[0] - 2

    def mul(a, b):
        c, t = cmul(new(), a, b)
        ops.extend(t)
        return c

    E = {}
    for n, lam in enumerate((1, 8, 64, 256)):
        t = 36 + 4 * n
        if lam == 1:
            al, be = 30, 35
        else:
            al, be = t, t + 1
            ops.append(f"v_mul_f32 v{al}, {fbits(float(lam))}, v30")
            ops.append(f"v_mul_f32 v{be}, {fbits(float(lam))}, v35")
        E[lam] = Cx(new(), "N")
        ops += [f"v_exp_f32 v{t}, v{al}", f"v_cos_f32 v{t+2}, v{be}", f"v_sin_f32 v{t+3}, v{be}",
                f"v_pk_mul_f32 {E[lam].p}, v[{t+2}:{t+3}], v[{t}:{t+1}] op_sel_hi:[1,0]"]
    Y = {0: mul(Cx(28, "N"), Cx(32, "N"))}
    for j in range(1, 4):
        Y[8 * j] = mul(Y[8 * j - 8], E[64])
    for b in range(1, 8):
        for j in range(4):
            Y[8 * j + b] = mul(Y[8 * j + b - 1], E[8])
    for lam, (x, y) in {2: (1, 1), 3: (2, 1), 4: (2, 2), 5: (4, 1), 6: (4, 2), 7: (4, 3), 258: (256, 2), 260: (256, 4),
                        262: (256, 6), 512: (256, 256), 516: (512, 4), 768: (512, 256), 772: (768, 4),
                        1024: (512, 512), 1280: (1024, 256), 1536: (1024, 512), 1792: (1024, 768),
                        2048: (1024, 1024)}.items():
        E[lam] = mul(E[x], E[y])
    assert nxt[0] <= 176
    rows = [(b, Y[b], "-") for b in range(32)]
    rows += [(32 + i, E.get(lam), "") for i, lam in enumerate(LAMBDA)]
    rows += [(48 + i, E[1024 + 256 * i], "") for i in range(5)]
    for r, c, sg in rows:
        if c is None:
            ops.append(f"v_mov_b32 v{176 + r}, 0x3f80")
        else:
            ops.append(f"v_cvt_pk_bf16_f32 v{176 + r}, v{c.re}, {sg}v{c.im}")
        ops.append(f"ds_write_b32 v247, v{176 + r} offset:{C_ROW * r}")
    for x in schedule(ops):
        k(x)
    stamp(k, 10)
    k(f"""
    v_cmp_gt_u32 vcc, 40, v0
    s_and_saveexec_b64 s[30:31], vcc
    s_cbranch_execz L_fc_noclr
    global_store_dwordx4 v6, v[16:19], s[20:21]
    L_fc_noclr:
    s_mov_b64 exec, -1
    v_mov_b32 v6, 0
    global_load_dword v7, v6, s[50:51] sc1
    s_waitcnt lgkmcnt(0)
    s_barrier
    """)
    rd = []
    for kap in range(8):
        o = C_TS * (kap >> 2) + 64 * (kap & 3)
        b = 64 + 12 * kap
        rd += [f"ds_read_b128 v[{b}:{b+3}], v250 offset:{o}",
               f"ds_read_b128 v[{b+4}:{b+7}], v248 offset:{o + 32 * C_ROW}",
               f"ds_read_b128 v[{b+8}:{b+11}], v249 offset:{o + 48 * C_ROW}"]
    issued = 12
    for x in rd[:issued]:
        k(x)
    for kap in range(8):
        b = 64 + 12 * kap
        k(f"s_waitcnt lgkmcnt({issued - 3 * (kap + 1)})")
        k(f"v_mfma_f32_16x16x32_bf16 v[24:27], v[{b+4}:{b+7}], v[{b}:{b+3}], {'v[24:27]' if kap else '0'}")
        k(f"v_mfma_f32_16x16x32_bf16 v[28:31], v[{b+8}:{b+11}], v[{b}:{b+3}], {'v[28:31]' if kap else '0'}")
        for x in rd[issued:issued + 3]:
            k(x)
        issued = min(24, issued + 3)
    stamp(k, 2)
    k(f"""
    s_xor_b32 s30, s45, 1
    s_mov_b32 s31, 0
    v_and_b32 v20, 1, v1
    v_lshl_add_u32 v20, v20, 4, s40
    s_lshl_b32 s46, s45, 6
    v_add_u32 v20, s46, v20
    ds_write2_b32 v244, v24, v25 offset0:0 offset1:1
    ds_write2_b32 v245, v26, v27 offset0:0 offset1:1
    ds_write_b32 v246, v28
    s_mov_b64 exec, s[30:31]
    ds_write_b32 v241, v29 offset:{4 * (672 + 21)}
    s_mov_b64 exec, -1
    s_waitcnt lgkmcnt(0)
    s_barrier
    """)
    stamp(k, 11)
    assert C_KC % 256 == 0 and C_HSZ % 256 == 0
    for e in range(9):
        k(f"ds_read2st64_b32 v[{64 + 2 * e}:{65 + 2 * e}], v{232 + e} offset0:{C_KC // 256} offset1:{(C_KC + C_HSZ) // 256}")
    k(f"ds_write_b128 v20, v[16:19] offset:{C_KR + 4096}")
    k("s_waitcnt lgkmcnt(1)")
    for ch in range(2):
        for c in range(2):
            o = 24 + 8 * ch + 4 * c
            for q in range(4):
                k(f"v_cvt_pk_bf16_f32 v{o + q}, v{64 + ch + 2 * (2*q + c)}, v{64 + ch + 2 * (2*q + c + 1)}")
            k(f"ds_write_b128 v5, v[{o}:{o+3}] offset:{C_KR + C_TS * (2 * ch + c) + 64 * c}")
    stamp(k, 3)
    k(f"s_setprio {Opt.f_cprio}")
    k("s_cmp_lg_u32 s22, 0")
    k("s_cbranch_scc1 L_fc_go")
    spin(k, "fc_rdy", 6, 7, "s[50:51]", 1, first_loaded=True)
    k(f"""
    s_and_b32 s46, s2, 7
    s_lshl_b32 s46, s46, 8
    s_add_u32 s46, s46, {WS_SYN + 2048}
    v_mov_b32 v6, s46
    """)
    spin(k, "fc_flag", 6, 7, "s[20:21]", 8)
    k(f"""
    L_fc_go:
    s_waitcnt vmcnt(0) lgkmcnt(0)
    s_barrier
    """)
    stamp(k, 4)
    ACC = 16

    def a_reads(rr):
        base = 64 + 64 * (rr & 1)
        out = []
        for i in range(8):
            ra = base + 4 * i
            m = 7 - i
            off = 16 * rr + 128 * (m & 1)
            out.append([f"ds_read2_b32 v[{ra}:{ra+1}], v{60 + (m >> 1)} offset0:{off} offset1:{off+1}",
                        f"ds_read2_b32 v[{ra+2}:{ra+3}], v{60 + (m >> 1)} offset0:{off+2} offset1:{off+3}"])
        return out

    def b_reads(rr):
        base = 64 + 64 * (rr & 1) + 32
        return [f"ds_read_b128 v[{base+4*i}:{base+4*i+3}], v58 offset:{C_HS + 64 * rr + 512 * i}" for i in range(8)]

    started = set()

    def mfma(rr, ia, ib):
        base = 64 + 64 * (rr & 1)
        q = ia + ib
        c = f"v[{ACC+4*q}:{ACC+4*q+3}]" if q in started else "0"
        started.add(q)
        return f"v_mfma_f32_16x16x32_bf16 v[{ACC+4*q}:{ACC+4*q+3}], v[{base+4*ia}:{base+4*ia+3}], v[{base+32+4*ib}:{base+32+4*ib+3}], {c}"

    k(f"""
    global_load_dword v50, v56, s[20:21] offset:-2048 sc1
    global_load_dword v48, v56, s[20:21] sc1
    global_load_dword v52, v56, s[20:21] offset:2048 sc1
    global_load_dwordx4 v[208:211], v251, s[20:21] sc1
    global_load_dwordx4 v[212:215], v252, s[20:21] sc1
    """)
    L = 0
    if Opt.f_wpos == 7:
        L = 3
        k(f"""
        s_barrier
        global_load_dwordx4 v[216:219], v242, s[20:21] sc1
        global_load_dwordx4 v[220:223], v243, s[20:21] sc1
        s_barrier
        global_load_dword v255, v253, s[24:25] {Opt.nt1}
        """)
    for rr in range(2):
        for x in a_reads(rr):
            k(x[0])
            k(x[1])
    k(f"s_waitcnt vmcnt({2 + L})")
    for dpp in ("quad_perm:[2,3,0,1]", "row_ror:4"):
        for r in (48, 50, 52):
            k(f"v_add_f32_dpp v{r}, v{r}, v{r} {dpp} row_mask:0xf bank_mask:0xf")
    k(f"""
    v_cvt_pk_bf16_f32 v48, v48, v48
    v_cvt_pk_bf16_f32 v50, v50, v52
    v_lshlrev_b32 v48, 16, v48
    v_and_b32 v52, 0xffff0000, v50
    v_add_f32 v48, 1.0, v48
    v_lshlrev_b32 v50, 16, v50
    v_cvt_pk_bf16_f32 v48, v48, v48
    v_mul_f32 v50, v50, v52
    v_lshlrev_b32 v48, 16, v48
    v_mul_f32 v48, v48, v52
    """)
    stamp(k, 14)
    HF = 224
    for it in range(2):
        k(f"s_waitcnt vmcnt({1 - it + L})")
        h = HF + 8 * it
        unpack8(k, h, 208 + 4 * it)
        for q in range(4):
            k(f"v_pk_fma_f32 v[{h+2*q}:{h+2*q+1}], v[{h+2*q}:{h+2*q+1}], v[48:49], v[50:51] op_sel_hi:[1,0,0]")
        for q in range(4):
            k(f"v_cvt_pk_bf16_f32 v{208+4*it+q}, v{h+2*q}, v{h+2*q+1}")
        k(f"ds_write_b128 v3, v[{208+4*it}:{211+4*it}] offset:{C_HS + 480 + 2048 * it}")
    k("s_waitcnt lgkmcnt(0)")
    k("s_barrier")
    stamp(k, 5)
    basew = [f"s_waitcnt vmcnt({1 if L else 0})"]
    for it in range(2):
        for i in range(4):
            basew += [f"v_lshlrev_b32 v{192+2*i}, 16, v{216+4*it+i}", f"v_and_b32 v{193+2*i}, 0xffff0000, v{216+4*it+i}"]
        basew += [f"v_fma_f32 v{HF+8*it+i}, v{HF+8*it+i}, v57, v{192+i}" for i in range(8)]
        basew += [f"ds_write_b128 v4, v[{HF+8*it}:{HF+8*it+3}] offset:{C_BASE + C_TS * it}",
                  f"ds_write_b128 v4, v[{HF+8*it+4}:{HF+8*it+7}] offset:{C_BASE + C_TS * it + 16}"]
    eadr = lines(f"""
    s_lshl_b32 s46, s23, 1
    s_add_u32 s46, s46, s39
    s_and_b32 s47, s46, 7
    s_lshl_b32 s46, s46, 8
    s_lshl_b32 s43, s45, 20
    s_add_u32 s46, s46, s43
    s_add_u32 s46, s46, {WS_X1T}
    v_and_b32 v56, 7, v14
    v_xor_b32 v56, s47, v56
    v_lshlrev_b32 v56, 5, v56
    v_lshl_add_u32 v56, v15, 3, v56
    v_lshrrev_b32 v9, 3, v14
    v_lshl_add_u32 v56, v9, 17, v56
    v_add_u32 v56, s46, v56
    v_lshl_add_u32 v8, v1, 4, s40
    s_xor_b32 s46, s22, 1
    s_mul_i32 s46, s46, {C_TS}
    v_lshl_add_u32 v9, v1, 4, s46
    """)
    b0, b1 = b_reads(0), b_reads(1)
    for x in b0:
        k(x)
    if not L:
        k("global_load_dwordx4 v[216:219], v242, s[20:21] sc1")
        k("global_load_dwordx4 v[220:223], v243, s[20:21] sc1")
    pos = 0
    for ib in range(8):
        k(f"s_waitcnt lgkmcnt({7 - ib + pos})")
        for ia in range(8 - ib):
            k(mfma(0, ia, ib))
            if pos < 8 and ib >= 1:
                k(b1[pos])
                pos += 1
    for rr in range(1, 4):
        k("s_waitcnt lgkmcnt(0)")
        mm = [mfma(rr, ia, ib) for ib in range(8) for ia in range(8 - ib)]
        rd = []
        if rr < 3:
            for x, y in zip(a_reads(rr + 1), b_reads(rr + 1)):
                rd += x + [y]
        other = {1: [], 2: eadr, 3: basew}[rr]
        for x in front(mm, rd, [], [], other):
            k(x)
    stamp(k, 6)
    for nh in range(2):
        if nh == 0:
            k("s_cmp_eq_u32 s45, 0")
            k("s_cbranch_scc0 L_fc_x1")
        else:
            k("L_fc_x1:")
            k("s_nop 6")
        own, oth = ACC + 16 * nh, ACC + 16 * (1 - nh)
        for q in range(4):
            k(f"ds_write_b128 v8, v[{oth+4*q}:{oth+4*q+3}] offset:{C_RED + 1024*q}")
        k("s_waitcnt lgkmcnt(0)")
        k("s_barrier")
        for q in range(4):
            k(f"ds_read_b128 v[{64+8*q}:{67+8*q}], v9 offset:{C_RED + 1024*q}")
            k(f"ds_read_b128 v[{68+8*q}:{71+8*q}], v59 offset:{C_BASE + 1024*q}")
        for q in range(4):
            a = own + 4 * q
            k(f"s_waitcnt lgkmcnt({6 - 2 * q})")
            for o in (64, 68):
                k(f"v_pk_add_f32 v[{a}:{a+1}], v[{a}:{a+1}], v[{o+8*q}:{o+8*q+1}]")
                k(f"v_pk_add_f32 v[{a+2}:{a+3}], v[{a+2}:{a+3}], v[{o+8*q+2}:{o+8*q+3}]")
            k(f"v_cvt_pk_bf16_f32 v{96+2*q}, v{a}, v{a+1}")
            k(f"v_cvt_pk_bf16_f32 v{97+2*q}, v{a+2}, v{a+3}")
            k(f"global_store_dwordx2 v56, v[{96+2*q}:{97+2*q}], s[20:21]")
            if q < 3:
                k(f"v_add_u32 v56, 0x40000, v56")
        if nh == 0:
            stamp_out(k, 0, "s[20:21]", 15, 110, last=7)
        k("s_endpgm")


def gen_f():
    k = Kernel("f_kernel")
    stamp(k, 0)
    k(f"""
    s_load_dwordx16 s[4:19], s[0:1], {KA_ARE}
    s_load_dwordx2 s[52:53], s[0:1], {KA_U}
    s_load_dwordx4 s[60:63], s[0:1], {KA_C}
    s_load_dwordx2 s[20:21], s[0:1], {KA_WS}
    s_load_dwordx2 s[50:51], s[0:1], {KA_DBG}
    s_load_dwordx4 s[44:47], s[0:1], {KA_WG}
    s_load_dwordx2 s[54:55], s[0:1], {KA_WD}
    """)
    code_prefetch(k, 254, 255, "L_code_end")
    k(f"""
    v_and_b32 v1, 63, v0
    v_lshrrev_b32 v2, 6, v0
    s_xor_b32 s2, s2, {256 * Opt.f_swap}
    s_cmp_lt_u32 s2, 256
    s_cbranch_scc1 L_f_aux
    s_cmp_ge_u32 s2, 512
    s_cbranch_scc1 L_f_end
    s_and_b32 s23, s2, 7
    s_lshl_b32 s23, s23, 5
    s_bfe_u32 s24, s2, 0x50003
    s_add_u32 s23, s23, s24
    s_lshl_b32 s24, s23, 8
    v_add_lshl_u32 v3, s24, v0, 1
    s_lshl_b32 s24, s23, 2
    s_waitcnt lgkmcnt(0)
    global_load_ushort v8, v3, s[4:5] {Opt.nt}
    global_load_ushort v9, v3, s[6:7] {Opt.nt}
    global_load_ushort v10, v3, s[8:9] {Opt.nt}
    global_load_ushort v11, v3, s[10:11] {Opt.nt}
    global_load_ushort v12, v3, s[12:13] {Opt.nt}
    global_load_ushort v13, v3, s[14:15] {Opt.nt}
    s_load_dword s28, s[16:17], s24
    s_load_dword s29, s[18:19], s24
    s_branch L_f_conv
    L_f_aux:
    """)
    gen_f_aux(k)
    k("L_f_end:")
    k("s_endpgm")
    k("L_f_conv:")
    gen_f_conv(k)
    return k


G_SLOT = 45056
G_TAB = 3 * G_SLOT
G_X = G_TAB + 4096
G_LDS = G_X + 8192
G_RING = 9

def gen_g():
    k = Kernel("g_kernel")
    vm = VM(k)
    ACC = 16
    GR = 128
    FR = 144
    ONE = 232
    S = 236
    H = 244
    AU = 224
    BP = Opt.g_bp
    ROT = {0: "s_lshr_b32 s28, s17, 1\ns_and_b32 s61, s17, 1",
           1: "s_lshl_b32 s28, s25, 1\ns_bfe_u32 s61, s2, 0x10001\ns_add_u32 s28, s28, s61\ns_and_b32 s28, s28, 7\ns_lshr_b32 s61, s17, 3",
           2: "s_lshl_b32 s28, s25, 1\ns_bfe_u32 s61, s2, 0x10001\ns_add_u32 s28, s28, s61\ns_add_u32 s28, s28, s16\ns_and_b32 s28, s28, 7\ns_lshr_b32 s61, s17, 3",
           3: "s_lshl_b32 s28, s25, 1\ns_bfe_u32 s61, s2, 0x10001\ns_add_u32 s28, s28, s61\ns_and_b32 s61, s16, 6\ns_add_u32 s28, s28, s61\ns_and_b32 s28, s28, 7\ns_lshr_b32 s61, s17, 3",
           4: "s_lshl_b32 s28, s25, 1\ns_bfe_u32 s61, s2, 0x10001\ns_add_u32 s28, s28, s61\ns_and_b32 s61, s16, 4\ns_add_u32 s28, s28, s61\ns_and_b32 s28, s28, 7\ns_lshr_b32 s61, s17, 3"}[Opt.g_r1]
    stamp(k, 0)
    k(f"""
    s_load_dwordx2 s[4:5], s[0:1], {KA_WS}
    s_load_dwordx2 s[6:7], s[0:1], {KA_OUT}
    s_cmp_ge_u32 s2, 256
    s_cbranch_scc1 L_g_end
    v_and_b32 v1, 63, v0
    v_lshrrev_b32 v2, 6, v0
    v_lshlrev_b32 v3, 4, v1
    v_readfirstlane_b32 s22, v2
    s_and_b32 s16, s2, 1
    s_lshl_b32 s16, s16, 3
    s_bfe_u32 s17, s2, 0x30003
    s_add_u32 s16, s16, s17
    s_and_b32 s17, s2, 6
    s_lshl_b32 s17, s17, 1
    s_lshr_b32 s25, s2, 6
    s_add_u32 s17, s17, s25
    s_lshl_b32 s18, s16, 17
    s_add_u32 s18, s18, {WS_X1T}
    s_mul_i32 s19, s17, {16 * 14 * 1024}
    s_add_u32 s19, s19, {WS_W1P}
    s_lshl_b32 s23, s22, 11
    s_lshl_b32 s24, s22, 12
    s_mul_i32 s29, s22, 3072
    s_add_u32 s29, s29, 16384
    v_add_u32 v4, s23, v3
    v_add_u32 v5, s24, v3
    v_add_u32 v6, s29, v3
    s_mov_b32 s10, 131072
    s_mov_b32 s11, 0x20000
    s_mov_b32 s14, {16 * 14 * 1024}
    s_mov_b32 s15, 0x20000
    {ROT}
    s_mov_b32 s33, s28
    s_waitcnt lgkmcnt(0)
    s_add_u32 s8, s4, s18
    s_addc_u32 s9, s5, 0
    s_add_u32 s12, s4, s19
    s_addc_u32 s13, s5, 0
    """)

    def part(s):
        base = (s // 2 % 3) * G_SLOT
        t = f"p{s}"
        if s % 2 == 0:
            a = ["s_lshl_b32 s26, s28, 14", f"s_add_u32 m0, s23, {base}", "s_mul_i32 s27, s28, 28672"]
            a += [(f"buffer_load_dwordx4 v4, s[8:11], s26 offen offset:{1024*i} lds", t) for i in range(2)]
            a += [f"s_add_u32 m0, s24, {base + 16384}", "s_add_u32 s26, s26, 8192"]
            a += [(f"buffer_load_dwordx4 v5, s[12:15], s27 offen offset:{1024*i} lds", t) for i in range(4)]
            return a
        b = [f"s_add_u32 m0, s23, {base + 8192}", "s_add_u32 s28, s28, 1"]
        b += [(f"buffer_load_dwordx4 v4, s[8:11], s26 offen offset:{1024*i} lds", t) for i in range(2)]
        b += [f"s_add_u32 m0, s29, {base + 16384}", "s_and_b32 s28, s28, 7"]
        b += [(f"buffer_load_dwordx4 v6, s[12:15], s27 offen offset:{1024*i} lds", t) for i in range(3)]
        return b

    def take(q, n):
        out = []
        while q and n > 0:
            x = q.pop(0)
            out.append(x)
            n -= isinstance(x, tuple)
        return out

    raddr = lines(f"""
    s_and_b32 s30, s22, 1
    s_lshl_b32 s31, s22, 1
    s_or_b32 s31, s31, s61
    v_lshrrev_b32 v9, 2, v1
    v_and_b32 v14, 7, v9
    v_xor_b32 v14, s31, v14
    v_lshlrev_b32 v9, 8, v9
    v_and_b32 v15, 3, v1
    v_lshl_add_u32 v9, v15, 3, v9
    """)
    for u in range(4):
        raddr += [f"v_xor_b32 v15, {u}, v14", f"v_lshl_add_u32 v{10+u}, v15, 5, v9"]
    raddr += lines(f"""
    s_mul_i32 s32, s30, 7168
    s_add_u32 s32, s32, 16384
    v_add_u32 v14, s32, v3
    """)
    raddr += [f"v_mov_b32 v{ONE + r}, 0x3f803f80" for r in range(4)]
    saddr = lines(f"""
    v_and_b32 v252, 15, v1
    v_lshrrev_b32 v253, 4, v1
    v_and_b32 v15, 3, v1
    v_cmp_eq_u32 s[46:47], 1, v15
    v_cmp_eq_u32 s[48:49], 2, v15
    v_cmp_eq_u32 s[50:51], 3, v15
    v_bfe_u32 v15, v1, 2, 2
    v_cmp_eq_u32 s[52:53], v253, v15
    s_lshl_b32 s25, s16, 3
    s_add_u32 s25, s25, s31
    s_lshl_b32 s25, s25, 10
    s_lshl_b32 s32, s33, 7
    s_add_u32 s32, s32, s25
    s_add_u32 s32, s32, {WS_STP}
    v_lshlrev_b32 v15, 3, v252
    v_add_u32 v254, s32, v15
    v_lshlrev_b32 v255, 10, v253
    v_xor_b32 v255, s25, v255
    v_add_u32 v255, v255, v15
    v_add_u32 v255, {WS_STP}, v255
    """)
    p2addr = [
        "s_and_b32 s34, s2, 7", "s_lshl_b32 s34, s34, 2", "s_bfe_u32 s35, s2, 0x20003", "s_add_u32 s34, s34, s35",
        "s_lshr_b32 s35, s2, 5", f"s_mul_i32 s25, s34, {224 * 1024}", f"s_add_u32 s25, s25, {WS_HH}",
        "s_add_u32 s36, s4, s25\ns_addc_u32 s37, s5, 0", f"s_mov_b32 s38, {224 * 1024}", "s_mov_b32 s39, 0x20000",
        f"s_mul_i32 s25, s35, {224 * 1024}", f"s_add_u32 s25, s25, {WS_W2P}",
        "s_add_u32 s40, s4, s25\ns_addc_u32 s41, s5, 0", f"s_mov_b32 s42, {224 * 1024}", "s_mov_b32 s43, 0x20000",
        "s_and_b32 s44, s2, 7", f"s_mul_i32 s44, s44, {Opt.g_rot}", "s_lshr_b32 s44, s44, 2", "s_lshl_b32 s44, s44, 12",
        "s_mov_b32 s45, s44", f"s_mul_i32 s60, s22, {56 * 1024}"]
    if Opt.g_map:
        p2addr[:5] = ["s_and_b32 s34, s2, 6", "s_lshl_b32 s34, s34, 2", "s_bfe_u32 s35, s2, 0x30003", "s_add_u32 s34, s34, s35",
                      "s_and_b32 s35, s2, 1", "s_lshl_b32 s35, s35, 2", "s_lshr_b32 s25, s2, 6", "s_add_u32 s35, s35, s25"]

    def nextk(r):
        return f"s_add_u32 s{r}, s{r}, 4096\ns_cmp_eq_u32 s{r}, {56 * 1024}\ns_cselect_b32 s{r}, 0, s{r}"
    eaddr = lines(f"""
    s_mul_i32 s57, s17, 14
    s_mul_i32 s32, s30, 7
    s_add_u32 s57, s57, s32
    s_lshl_b32 s54, s16, 1
    s_lshr_b32 s25, s22, 1
    s_add_u32 s54, s54, s25
    s_mul_i32 s58, s54, 224
    s_add_u32 s58, s58, s57
    s_lshl_b32 s58, s58, 10
    s_add_u32 s58, s58, {WS_HH}
    s_lshl_b32 s57, s57, 10
    s_add_u32 s57, s57, {WS_W1A + 3072}
    s_and_b32 s59, s31, 3
    s_lshl_b32 s59, s59, 8
    s_lshl_b32 s54, s54, 2
    s_lshr_b32 s32, s17, 2
    s_add_u32 s54, s54, s32
    s_lshl_b32 s54, s54, 8
    s_add_u32 s54, s54, {WS_CNT}
    """)
    xaddr = lines(f"""
    v_lshrrev_b32 v7, 3, v1
    v_lshl_add_u32 v7, v2, 4, v7
    v_lshlrev_b32 v7, 8, v7
    v_lshrrev_b32 v9, 5, v1
    s_and_b32 s25, s34, 1
    v_xor_b32 v9, s25, v9
    v_lshl_add_u32 v7, v9, 7, v7
    v_and_b32 v9, 7, v1
    v_lshl_add_u32 v7, v9, 4, v7
    s_lshr_b32 s25, s34, 1
    s_lshl_b32 s25, s25, 17
    s_lshl_b32 s32, s35, 14
    s_add_u32 s25, s25, s32
    s_add_u32 s25, s25, {WS_X1T}
    v_add_u32 v7, s25, v7
    v_add_u32 v9, 2048, v7
    v_lshlrev_b32 v8, 4, v252
    v_lshl_add_u32 v8, v253, 10, v8
    v_add_u32 v8, s60, v8
    v_add_u32 v15, s57, v3
    """)
    early = raddr + saddr + p2addr + eaddr + xaddr
    stamp(k, 9)
    queue = [x for s in range(16) for x in part(s)]
    vm.emit(take(queue, 6))
    if Opt.g_pbar & 1:
        k("s_barrier")
    vm.emit(merge(take(queue, Opt.g_pre - 6), early))
    stamp(k, 10)

    publish = [
        f"v_cndmask_b32 v{GR}, v{GR}, v{GR+1}, s[46:47]",
        f"v_cndmask_b32 v{GR}, v{GR}, v{GR+2}, s[48:49]",
        f"v_cndmask_b32 v{GR}, v{GR}, v{GR+3}, s[50:51]",
        f"v_or_b32 v{GR+5}, 0x80000000, v{GR}",
        (f"s_mov_b64 exec, s[52:53]\nglobal_store_dwordx2 v254, v[{GR+4}:{GR+5}], s[4:5] sc1\ns_mov_b64 exec, -1", "pub"),
    ]
    gather = [(f"global_load_dwordx2 v[{GR+2*i}:{GR+2*i+1}], v255, s[4:5] offset:{128*i} sc1", "gat") for i in range(8)]
    check = [f"v_and_b32 v{S}, v{GR+1}, v{GR+3}", f"v_and_b32 v{S+1}, v{GR+5}, v{GR+7}",
             f"v_and_b32 v{S+2}, v{GR+9}, v{GR+11}", f"v_and_b32 v{S+3}, v{GR+13}, v{GR+15}",
             f"v_and_b32 v{S}, v{S}, v{S+1}", f"v_and_b32 v{S+2}, v{S+2}, v{S+3}",
             f"v_and_b32 v{S}, v{S}, v{S+2}", f"v_cmp_le_i32 vcc, 0, v{S}"]
    stats1 = [lambda: vm.wait("gat")] + check + ["s_cbranch_vccnz L_g_retry\nL_g_ok:"]
    stats2 = [f"v_add_f32 v{GR+r}, v{GR+r}, v{GR+step+r}" for step in (8, 4, 2) for r in range(step)]
    stats3 = lines(f"""
    v_mul_f32 v{GR}, {fbits(-1.0 / 512)}, v{GR}
    v_mul_f32 v{GR+1}, {fbits(-1.0 / 512)}, v{GR+1}
    v_cvt_pk_bf16_f32 v{S}, v{GR}, v{GR}
    v_fma_f32 v{GR+1}, -v{GR}, v{GR}, v{GR+1}
    v_max_f32 v{GR+1}, 0, v{GR+1}
    v_add_f32 v{GR+1}, {fbits(1e-5)}, v{GR+1}
    v_sqrt_f32 v{GR+1}, v{GR+1}
    v_mov_b32 v{S+2}, v{S}
    s_lshl_b32 s25, s22, 10
    s_add_u32 s25, s25, {G_TAB}
    v_cvt_pk_bf16_f32 v{S+1}, v{GR+1}, v{GR+1}
    v_add_u32 v4, s25, v3
    v_mov_b32 v{S+3}, v{S+1}
    ds_write_b128 v4, v[{S}:{S+3}]
    v_lshlrev_b32 v4, 4, v252
    v_add_u32 v4, s25, v4
    """)
    stats4 = [f"ds_read_b128 v[{GR+4*u}:{GR+4*u+3}], v4 offset:{256*u}" for u in range(4)]
    stats4 += ["v_xor_b32 v5, s59, v3", "v_add_u32 v5, s58, v5", "v_add_u32 v6, 4096, v5"]
    tailq = [(f"global_load_dwordx4 a[{AU+4*i}:{AU+4*i+3}], v15, s[4:5] offset:{1024*i - 3072}", "aug") for i in range(7)]
    tailq += [f"s_add_u32 m0, s23, {G_X}", ("global_load_lds_dwordx4 v7, s[4:5]", "xr"),
              f"s_add_u32 m0, s23, {G_X + 1024}", ("global_load_lds_dwordx4 v9, s[4:5]", "xr")]
    w2q = []
    for n in range(56):
        if n and n & 3 == 0:
            w2q.append(nextk(44))
        w2q.append((f"buffer_load_dwordx4 a[{4*n}:{4*n+3}], v8, s[40:43], s44 offen offset:{256*(n & 3)}", "w2"))

    def reads(s):
        b = FR + 44 * (s & 1)
        ks = s & 1
        xs, wsr = [], []
        for u in range(4):
            for j in range(2):
                xs.append(f"ds_read_b64_tr_b16 v[{b+4*u+2*j}:{b+4*u+2*j+1}], v{10+u} offset:{8192*ks + 4096*j}")
        for i in range(7):
            wsr.append(f"ds_read_b128 v[{b+16+4*i}:{b+19+4*i}], v14 offset:{14336*ks + 1024*i}")
        return wsr[:1] + xs + wsr[1:]

    def mft(s, i, rev=None):
        b = FR + 44 * (s & 1)
        out = []
        for u in (range(3, -1, -1) if (i % 2 if rev is None else rev) else range(4)):
            a = ACC + 16 * i + 4 * u
            c = "0" if s == 0 else f"v[{a}:{a+3}]"
            if s == 16:
                out.append(f"v_mfma_f32_16x16x32_bf16 v[{a}:{a+3}], a[{AU+4*i}:{AU+4*i+3}], v[{GR+4*u}:{GR+4*u+3}], {c}")
            else:
                out.append(f"v_mfma_f32_16x16x32_bf16 v[{a}:{a+3}], v[{b+16+4*i}:{b+19+4*i}], v[{b+4*u}:{b+4*u+3}], {c}")
        return out

    def mf(s):
        b = FR + 44 * (s & 1)
        out = [x for i in range(7) for x in mft(s, i)]
        if s < 2:
            x = f"v[{b}:{b+3}]"
            c0 = "0" if s == 0 else f"v[{GR}:{GR+3}]"
            c1 = "0" if s == 0 else f"v[{GR+4}:{GR+7}]"
            out.insert(8, f"v_mfma_f32_16x16x32_bf16 v[{GR}:{GR+3}], {x}, {x}, {c0}")
            out.insert(9, f"v_mfma_f32_16x16x32_bf16 v[{GR+4}:{GR+7}], v[{ONE}:{ONE+3}], {x}, {c1}")
        return out

    def epi(i):
        h = H + 4 * (i & 1)
        acc = [ACC + 16 * i + 4 * u for u in range(4)]
        out = []
        for u in (0, 2, 1, 3):
            out += [f"v_mul_f32 v{acc[u]+r}, v{acc[u]+r}, v{acc[u]+2+r}" for r in range(2)]
        for u in (0, 2, 1, 3):
            out.append(f"v_cvt_pk_bf16_f32 v{h+u}, v{acc[u]}, v{acc[u]+1}")
        out += [f"v_permlane32_swap_b32 v{h}, v{h+2}", f"v_permlane32_swap_b32 v{h+1}, v{h+3}",
                f"v_permlane16_swap_b32 v{h}, v{h+1}", f"v_permlane16_swap_b32 v{h+2}, v{h+3}"]
        out.append((f"global_store_dwordx4 v{5 + (i >> 2)}, v[{h}:{h+3}], s[4:5] offset:{1024 * (i & 3)} sc1", "hh"))
        return out

    vm.wait("p0")
    k("s_barrier")
    stamp(k, 1)
    for x in reads(0):
        k(x)
    vm.emit(take(queue, Opt.g_pre2))
    G0 = Opt.g_gat
    extra = {2: publish, G0: gather[:4], G0 + 1: gather[4:], 11: stats1, 12: stats2, 13: stats3, 14: stats4}
    done = [sum(6 - (t & 1) for t in range(s + 1)) for s in range(16)]
    FINE = Opt.g_fine
    for s in range(15):
        issued = sum(t.startswith("p") and t != "pub" for t in vm.tags)
        bar = s < FINE or s % 2 == 1
        bp = (Opt.g_bp0 if s < Opt.g_nbp0 else BP) if bar else 0
        free_before = (s + 4) if s % 2 == 1 else (s + 5)
        free_after = s + 6 if s % 2 == 1 else s + 5
        want = done[min(15, s + Opt.g_la, free_after)] - issued
        mem = take(queue, min(want, Opt.g_rate)) if queue else []
        nmem = sum(isinstance(x, tuple) for x in mem)
        if s >= Opt.g_tstart:
            mem = merge(mem, take(w2q, Opt.g_trickle))
        if not queue:
            mem += take(tailq, Opt.g_trate - nmem)
        assert not (queue and s >= 12)
        adv = []
        if s % 2 == 0 and s < 14:
            step = G_SLOT if (s // 2) % 3 != 2 else -2 * G_SLOT
            adv = [f"v_add_u32 v{r}, {step & 0xffffffff}, v{r}" for r in range(10, 15)]
        m = mf(s)
        nm = sum(isinstance(x, tuple) for x in mem)
        head = take(mem, max(0, min(nm * bp // len(m), done[min(15, free_before)] - issued)))
        k("s_waitcnt lgkmcnt(0)")
        if bar:
            vm.emit(front(m[:bp], [], [], head, []) if bp else head)
            upto = s + 1 if s + 1 < FINE else min(15, s + 2)
            assert vm.tags.count(f"p{upto}") == 6 - (upto & 1), s
            vm.wait(f"p{upto}")
            k("s_barrier")
        vm.emit(front(m[bp:], reads(s + 1), adv, mem, extra.get(s, [])))
        if Opt.g_steps:
            stamp(k, s + 1, True)
        elif s in (1, 7, 11):
            stamp(k, {1: 12, 7: 13, 11: 14}[s])
    assert not queue and not tailq
    tailq = w2q
    vm.wait("aug", " lgkmcnt(0)")
    k("s_barrier")
    stamp(k, 15)
    vm.emit(mft(16, 0, False) + mft(16, 1, True) + mft(15, 0, False))
    for i in range(1, 7):
        c = (mft(16, i + 1, True) if i < 6 else []) + mft(15, i, False)
        e = epi(i - 1) + take(tailq, Opt.g_w2epi)
        vm.emit(c[:2] + interleave(c[2:], e))
    stamp(k, 2)
    vm.emit(epi(6))
    stamp(k, 3)
    vm.emit(take(tailq, Opt.g_w2drain))
    k("v_mov_b32 v7, s54")
    k("v_mov_b32 v9, 1")
    vm.wait("hh")
    vm.emit([("s_mov_b64 exec, 1\nglobal_atomic_add v7, v9, s[4:5] sc1\ns_mov_b64 exec, -1", "arr")])
    stamp(k, 4)
    vm.emit(take(tailq, 99))
    GB = 240
    R2 = 224
    k(f"""
    s_lshl_b32 s25, s35, 8
    s_add_u32 s25, s25, {WS_GB}
    v_lshlrev_b32 v9, 5, v253
    v_add_u32 v9, s25, v9
    v_mov_b32 v3, v252
    v_mov_b32 v4, v253
    """)
    for i in range(4):
        k(f"global_load_dwordx4 v[{GB+4*i}:{GB+4*i+3}], v9, s[4:5] offset:{128*(i>>1) + 16*(i&1)}")
    for u in range(4):
        k(f"v_xor_b32 v9, {u}, v2")
        k(f"v_lshl_add_u32 v{10+u}, v9, 8, v8")
    k(f"""
    s_lshl_b32 s55, s34, 2
    s_add_u32 s55, s55, s22
    s_lshl_b32 s25, s55, 10
    s_add_u32 s25, s25, {WS_STP}
    v_lshlrev_b32 v14, 3, v3
    v_lshl_add_u32 v14, v4, 8, v14
    v_add_u32 v14, s25, v14
    s_lshl_b32 s55, s55, 8
    s_add_u32 s55, s55, {WS_CNT}
    v_mov_b32 v7, s55
    s_mov_b32 s25, 0
    L_g_poll:
    global_load_dword v9, v7, s[4:5] sc1
    s_add_u32 s25, s25, 1
    s_cmp_gt_u32 s25, {SPIN_MAX}
    s_cbranch_scc1 L_g_go
    s_waitcnt vmcnt(0)
    v_cmp_ne_u32 vcc, 8, v9
    s_cbranch_vccnz L_g_poll
    L_g_go:
    """)
    stamp(k, 5)
    vm = VM(k)
    RG = 80

    def hloads(ks):
        b = RG + 16 * (ks % G_RING)
        out = [nextk(45)] if ks else []
        return out + [(f"buffer_load_dwordx4 v[{b+4*u}:{b+4*u+3}], v{10+u}, s[36:39], s45 offen sc1", f"h{ks}") for u in range(4)]

    def mf2(ks, order=(0, 1, 2, 3)):
        b = RG + 16 * (ks % G_RING)
        out = []
        for n, u in enumerate(order):
            for dt in (range(4) if n % 2 == 0 else range(3, -1, -1)):
                a = ACC + 16 * u + 4 * dt
                c = "0" if ks == 0 else f"v[{a}:{a+3}]"
                out.append(f"v_mfma_f32_16x16x32_bf16 v[{a}:{a+3}], a[{16*ks+4*dt}:{16*ks+4*dt+3}], v[{b+4*u}:{b+4*u+3}], {c}")
        return out

    r2ld = [(f"global_load_dwordx2 v[{R2+2*i}:{R2+2*i+1}], v14, s[4:5] offset:{128*i} sc1", "r2") for i in range(2)]
    r2a = [lambda: vm.wait("r2"), f"v_add_f32 v{R2}, v{R2}, v{R2+2}", f"v_add_f32 v{R2+1}, v{R2+1}, v{R2+3}"]
    for sw in (16, 32):
        r2a += [f"v_mov_b32 v{R2+2}, v{R2}", f"v_mov_b32 v{R2+3}, v{R2+1}",
                f"v_permlane{sw}_swap_b32 v{R2}, v{R2+2}", f"v_permlane{sw}_swap_b32 v{R2+1}, v{R2+3}",
                f"v_add_f32 v{R2}, v{R2}, v{R2+2}", f"v_add_f32 v{R2+1}, v{R2+1}, v{R2+3}"]
    r2b = lines(f"""
    v_mul_f32 v{R2}, {fbits(-1.0 / 512)}, v{R2}
    v_mul_f32 v{R2+1}, {fbits(-1.0 / 512)}, v{R2+1}
    v_fma_f32 v{R2+1}, -v{R2}, v{R2}, v{R2+1}
    v_max_f32 v{R2+1}, 0, v{R2+1}
    v_add_f32 v{R2+1}, {fbits(1e-5)}, v{R2+1}
    v_rcp_f32 v{R2+1}, v{R2+1}
    """)
    r2c = [f"v_mul_f32 v{GB+r}, v{GB+r}, v{R2+1}" for r in range(16)]
    raddr2 = ["v_lshlrev_b32 v13, 4, v1", "s_lshl_b32 s20, s22, 14", "s_lshl_b32 s21, s22, 12"]
    for u in range(1, 4):
        raddr2 += [f"s_xor_b32 s24, s22, {u}", "s_lshl_b32 s25, s24, 12", "s_add_u32 s25, s25, s20",
                   f"v_add_u32 v{8+u}, s25, v13", "s_lshl_b32 s25, s24, 14", "s_add_u32 s25, s25, s21",
                   f"v_add_u32 v{4+u}, s25, v13"]
    raddr3 = lines(f"""
    v_bfe_u32 v15, v1, 2, 2
    v_xor_b32 v14, s22, v15
    v_lshlrev_b32 v14, 5, v14
    v_lshl_add_u32 v15, v4, 3, v15
    v_lshl_add_u32 v14, v15, 7, v14
    v_and_b32 v15, 3, v1
    v_lshl_add_u32 v14, v15, 3, v14
    v_add_u32 v14, {G_X}, v14
    s_lshl_b32 s20, s34, 6
    s_lshl_b32 s21, s22, 4
    s_add_u32 s20, s20, s21
    s_lshl_b32 s20, s20, 10
    s_lshl_b32 s21, s35, 7
    s_add_u32 s20, s20, s21
    v_lshlrev_b32 v15, 10, v3
    v_lshl_add_u32 v15, v4, 4, v15
    v_add_u32 v15, s20, v15
    """)
    AHEAD = Opt.g_ahead
    assert 2 <= AHEAD <= 8
    extra2 = {1: r2ld, 3: raddr3, 6: r2a, 7: r2b, 8: r2c, 12: raddr2}
    for ks in range(AHEAD):
        vm.emit(hloads(ks))
    for ks in range(13):
        vm.wait(f"h{ks}")
        if ks == 0:
            stamp(k, 6)
        vm.emit(front(mf2(ks), [], [], hloads(ks + AHEAD) if ks + AHEAD < 14 else [], extra2.get(ks, [])))
    vm.wait("h13")
    last = mf2(13, order=(1, 2, 3, 0))
    wr = []
    for n, u in enumerate((1, 2, 3)):
        for dt in (range(4) if n % 2 == 0 else range(3, -1, -1)):
            a = ACC + 16 * u + 4 * dt
            wr.append(f"ds_write_b128 v{8+u}, v[{a}:{a+3}] offset:{1024*dt}")
    vm.emit(interleave(last, wr, start=8, per=1.0))
    stamp(k, 7)
    k("s_waitcnt lgkmcnt(0)")
    k("s_barrier")
    for dt in range(4):
        k(f"ds_read_b64_tr_b16 v[{96+2*dt}:{97+2*dt}], v14 offset:{4096*(dt>>1) + 512*(dt&1)}")
    for u in range(1, 4):
        for dt in range(4):
            a = ACC + 16 * u + 4 * dt
            k(f"ds_read_b128 v[{a}:{a+3}], v{4+u} offset:{1024*dt}")
        if u == 2:
            k("s_waitcnt lgkmcnt(8)")
            unpack8(k, 104, 96)
            unpack8(k, 112, 100)
    for u in range(1, 4):
        k(f"s_waitcnt lgkmcnt({4 * (3 - u)})")
        for p in range(8):
            k(f"v_pk_add_f32 v[{ACC+2*p}:{ACC+2*p+1}], v[{ACC+2*p}:{ACC+2*p+1}], v[{ACC+16*u+2*p}:{ACC+16*u+2*p+1}]")
    for hi in range(2):
        for p in range(4 * hi, 4 * hi + 4):
            k(f"v_pk_fma_f32 v[{ACC+2*p}:{ACC+2*p+1}], v[{ACC+2*p}:{ACC+2*p+1}], v[{GB+2*p}:{GB+2*p+1}], v[{104+2*p}:{105+2*p}]")
        for p in range(4 * hi, 4 * hi + 4):
            k(f"v_cvt_pk_bf16_f32 v{120+p}, v{ACC+2*p}, v{ACC+2*p+1}")
        k(f"global_store_dwordx4 v15, v[{120+4*hi}:{123+4*hi}], s[6:7] offset:{64*hi}")
    stamp_out(k, Opt.gslot, "s[4:5]", 16, 4, last=8)
    k("L_g_end:")
    k("s_endpgm")
    k("L_g_retry:")
    k("s_mov_b32 s56, 0")
    k("L_g_retry2:")
    for x in gather:
        k(x[0])
    k("s_add_u32 s56, s56, 1")
    k(f"s_cmp_gt_u32 s56, {SPIN_MAX}")
    k("s_waitcnt vmcnt(0)")
    k("s_cbranch_scc1 L_g_ok")
    for x in check:
        k(x)
    k("s_nop 0")
    k("s_cbranch_vccnz L_g_retry2")
    k("s_branch L_g_ok")
    return k


def gen_pf():
    k = Kernel("pf_kernel")
    stamp(k, 0)
    k(f"""
    s_load_dwordx2 s[4:5], s[0:1], {KA_WS}
    s_cmp_ge_u32 s2, 256
    s_cbranch_scc1 L_pf_end
    s_lshr_b32 s6, s2, 3
    s_bfe_u32 s7, s2, 0x20001
    s_mul_i32 s7, s7, {4 * 229376}
    s_mul_i32 s8, s6, 28672
    s_add_u32 s7, s7, s8
    s_add_u32 s7, s7, {WS_W1P}
    s_mul_i32 s8, s6, 57344
    s_add_u32 s8, s8, {WS_W2P}
    v_min_u32 v1, {223 if Opt.pf & 4 == 0 else 111}, v0
    v_min_u32 v4, 223, v0
    v_lshlrev_b32 v1, 7, v1
    v_lshlrev_b32 v4, 7, v4
    v_add_u32 v2, s7, v1
    v_add_u32 v3, s8, v4
    v_add_u32 v4, 28672, v3
    s_waitcnt lgkmcnt(0)
    """)
    if Opt.pf & 1:
        k("global_load_dword v5, v2, s[4:5]")
    if Opt.pf & 2:
        k("global_load_dword v6, v3, s[4:5]")
        k("global_load_dword v7, v4, s[4:5]")
    k("s_waitcnt vmcnt(0)")
    stamp_out(k, 1, "s[4:5]", 2, 8)
    k("L_pf_end:")
    k("s_endpgm")
    return k


def build(stampflag=False):
    Opt.stamp = stampflag
    ref = open(f"cdna_kernels/{NAME}.s.ref").read().split("\n")
    head = [ln for ln in ref[:ref.index(next(l for l in ref if l.startswith("; Override")))]]
    ks = [(gen_f(), 512, 256, F_LDS), (gen_g(), 256, 256, G_LDS)]
    if Opt.pf:
        Opt.gslot = 2
        ks[1:] = [(gen_pf(), 256, 256, 0), (gen_g(), 256, 256, G_LDS)]
    out = "\n".join(head) + "\n"
    for k, g, b, lds in ks:
        out += f"; @launch kernel={k.name} grid=({g},1,1) block=({b},1,1) lds={lds}\n"
    out += '.amdgcn_target "amdgcn-amd-amdhsa--gfx950"\n.text\n'
    kds = ""
    for k, g, b, lds in ks:
        t, kd = k.text()
        out += t
        kds += ".p2align 6\n" + kd
        print(f"{k.name}: vgpr {k.maxv + 1} agpr {k.maxa + 1} sgpr {k.maxs + 1} nops {k.nops} lds {lds}", file=sys.stderr)
    out += "L_code_end:\n"
    out += '.section .rodata,"a"\n' + kds
    return out


if __name__ == "__main__":
    st = "--stamp" in sys.argv
    for a in sys.argv[1:]:
        if a.startswith("--") and "=" in a:
            n, v = a[2:].split("=")
            assert hasattr(Opt, n), n
            setattr(Opt, n, v if isinstance(getattr(Opt, n), str) else int(v))
    dst = [a for a in sys.argv[1:] if not a.startswith("--")]
    path = dst[0] if dst else f"cdna_kernels/{NAME}.s"
    open(path, "w").write(build(st))
```
